```python
import torch

def _softmax(x, axis=-1):
    return torch.softmax(x, dim=axis)
def _gelu(x):
    return torch.nn.functional.gelu(x, approximate="tanh")
def _silu(x):
    return torch.nn.functional.silu(x)
def _sigmoid(x):
    return torch.sigmoid(x)
def _layernorm(x, axis=-1, eps=1e-5):
    m = x.mean(dim=axis, keepdim=True)
    v = x.var(dim=axis, keepdim=True, unbiased=False)
    return (x - m) / torch.sqrt(v + eps)
def _scatter_add(tgt, idx, src, axis=0):
    return tgt.clone().index_add_(axis, idx, src)
def _segment_sum(src, seg, n):
    out = torch.zeros((n,) + src.shape[1:], dtype=src.dtype)
    return out.index_add_(0, seg, src)
def _pad(x, pw):
    flat = tuple(v for pair in reversed(pw) for v in pair)
    return torch.nn.functional.pad(x, flat)

kernel_name = 'gated_mix__linear_attn_block__glu_gated_bilinear__prompt'

def setup_inputs():

    _w = (lambda a: (lambda t: t.to(torch.bfloat16) if t.is_floating_point() else t)(torch.as_tensor(a)))
    def _A_setup():
        B, S, D = 1, 2048, 512
        return {
            "x": _w((lambda *s: torch.randn(*s, dtype=torch.bfloat16) * 0.05)(B, S, D)),
            "wqkv": _w((lambda *s: torch.randn(*s, dtype=torch.bfloat16) * 0.8)(D, 3 * D)),
            "wo": _w((lambda *s: torch.randn(*s, dtype=torch.bfloat16) * 0.05)(D, D)),
        }
    _A_in = _A_setup()

    def _B_setup():
        B, S, D, F = 1, 2048, 512, 1792
        return {
            "x": _w((lambda *s: torch.randn(*s, dtype=torch.bfloat16) * 0.05)(B, S, D)),
            "w_gate": _w((lambda *s: torch.randn(*s, dtype=torch.bfloat16) * 1.6)(D, F) * (D ** -0.5)),
            "w_up": _w((lambda *s: torch.randn(*s, dtype=torch.bfloat16) * 1.6)(D, F) * (D ** -0.5)),
            "w_down": _w((lambda *s: torch.randn(*s, dtype=torch.bfloat16) * 1.6)(F, D) * (F ** -0.5)),
        }
    _B_in = _B_setup()

    return {
        "A_x": _A_in["x"],
        "A_wqkv": _A_in["wqkv"],
        "A_wo": _A_in["wo"],
        "B_x": _B_in["x"],
        "B_w_gate": _B_in["w_gate"],
        "B_w_up": _B_in["w_up"],
        "B_w_down": _B_in["w_down"],
        "gate_w": _w((lambda *s: torch.randn(*s, dtype=torch.bfloat16) * 0.05)(512) * 16.0),
    }

def reference(A_x, A_wqkv, A_wo, B_x, B_w_gate, B_w_up, B_w_down, gate_w):
    def _A_ref(x, wqkv, wo):
        B, S, D = x.shape
        H = 32; Dh = D // H
        qkv = (lambda x, *d: x.permute(*d))((x @ wqkv).reshape(B, S, 3, H, Dh), 2, 0, 3, 1, 4)
        q, k, v = qkv[0], qkv[1], qkv[2]
        phi = lambda t: torch.where(t > 0, t + 1, torch.exp(t)) + 1e-6
        pq, pk = phi(q), phi(k)
        kv = torch.einsum("bhsd,bhse->bhde", pk, v)
        z = torch.einsum("bhsd->bhd", pk)
        num = torch.einsum("bhqd,bhde->bhqe", pq, kv)
        den = torch.einsum("bhqd,bhd->bhq", pq, z)[..., None] + 1e-6
        o = num / den
        return (lambda x, *d: x.permute(*d))(o, 0, 2, 1, 3).reshape(B, S, D) @ wo

    def _B_ref(x, w_gate, w_up, w_down):
        g = torch.einsum("bsd,df->bsf", x, w_gate)
        u = torch.einsum("bsd,df->bsf", x, w_up)
        h = g * u
        return torch.einsum("bsf,fd->bsd", h, w_down)

    x = A_x
    g = _sigmoid((x * gate_w).sum(-1, keepdims=True))
    a = _A_ref(x, A_wqkv, A_wo)
    b = _B_ref(x, B_w_gate, B_w_up, B_w_down)
    return g * a + (1 - g) * b
```

```python
from gen import *
import hz

NSLOT = 18
RING = NSLOT * 2048
K2_LDS = 4 * RING
NST2 = 8
ST2_OFF = ST_OFF + 0x100000

def k2(opt):
    A = Asm()
    A.raw(".globl k2_kernel\n.p2align 8\n.type k2_kernel,@function\nk2_kernel:")
    A("s_cmp_ge_u32 s2, 256")
    A("s_cbranch_scc1 K2_END")
    A("s_load_dwordx2 s[12:13], s[0:1], 80")
    A("s_load_dwordx2 s[6:7], s[0:1], 48")
    A("s_load_dwordx2 s[4:5], s[0:1], 16")
    A("s_load_dwordx2 s[8:9], s[0:1], 64")
    A("s_and_b32 s52, s2, 7")
    A("s_lshr_b32 s53, s2, 3")
    if opt.k2map == 0:
        A("s_and_b32 s54, s53, 3")
        A("s_lshr_b32 s55, s53, 2")
        A("s_lshl2_add_u32 s20, s52, s54")
        A("s_mov_b32 s21, s55")
    else:
        A("s_and_b32 s55, s53, 7")
        A("s_lshr_b32 s54, s53, 3")
        A("s_lshr_b32 s56, s52, 1")
        A("s_lshl3_add_u32 s20, s56, s55")
        A("s_and_b32 s56, s52, 1")
        A("s_lshl2_add_u32 s21, s56, s54")
    A("v_lshrrev_b32 v1, 6, v0")
    A("v_and_b32 v0, 63, v0")
    A("v_readfirstlane_b32 s22, v1")
    if opt.k2rot:
        A("s_mul_i32 s56, s54, 7")
        A("s_mul_i32 s57, s55, 7")
        A("s_lshr_b32 s57, s57, 1")
        A("s_add_u32 s56, s56, s57")
        A("s_sub_u32 s57, s56, 28")
        A("s_cmp_ge_u32 s56, 28")
        A("s_cselect_b32 s56, s57, s56")
        A("s_lshl_b32 s60, s56, 10")
        A("s_lshl1_add_u32 s56, s54, s55")
    else:
        A("s_mov_b32 s60, 0")
        A("s_mov_b32 s56, 0")
    for h in range(8):
        A("s_add_u32 s57, s56, %d" % h)
        A("s_and_b32 s57, s57, 7")
        A("s_lshl_b32 s%d, s57, 10" % (70 + h))
    A("v_lshlrev_b32 v9, 4, v0")
    A("s_mul_i32 s52, s20, %d" % (2 * 114688))
    A("s_mul_i32 s53, s22, 28672")
    A("s_add_u32 s52, s52, s53")
    if H_OFF: A("s_add_u32 s52, s52, 0x%x" % H_OFF)
    A("v_add_u32 v1, s52, v9")
    A("v_add_u32 v2, 114688, v1")
    A("s_lshl_b32 s52, s20, 16")
    A("s_lshl_b32 s53, s22, 13")
    A("s_add_u32 s52, s52, s53")
    A("s_add_u32 s52, s52, 0x%x" % Q_OFF)
    A("v_add_u32 v3, s52, v9")
    A("v_add_u32 v4, 0x8000, v3")
    A("v_and_b32 v14, 31, v0")
    A("v_lshrrev_b32 v15, 5, v0")
    A("v_min_u32 v5, 16, v14")
    A("v_lshlrev_b32 v5, 6, v5")
    A("v_lshl_add_u32 v5, v15, 5, v5")
    A("s_lshl_b32 s52, s22, 14")
    A("s_add_u32 s52, s52, 0x%x" % KVT_OFF)
    A("v_add_u32 v5, s52, v5")
    A("s_lshl_b32 s52, s20, 9")
    A("s_add_u32 s23, s52, 0x%x" % G_OFF)
    A("v_lshlrev_b32 v9, 3, v14")
    A("v_lshrrev_b32 v16, 3, v0")
    A("v_and_b32 v17, 7, v0")
    A("v_lshlrev_b32 v17, 4, v17")
    A("v_lshl_add_u32 v17, v16, 11, v17")
    A("s_lshl_b32 s52, s21, 7")
    A("v_add_u32 v6, s52, v17")
    A("v_xor_b32 v7, 64, v6")
    A("s_mul_i32 s63, s22, %d" % (28 * 16384))
    A("s_lshl_b32 s64, s22, 17")
    A("s_mul_i32 s62, s22, %d" % RING)
    A("s_waitcnt lgkmcnt(0)")
    srd(A, 40, 12, WS_SIZE)
    srd(A, 28, 6, 1792 * 512 * 2)
    srd(A, 24, 4, 512 * 512 * 2)
    srd(A, 32, 8, 2048 * 512 * 2)
    opt.stv = 30
    if opt.stamps: stamp(A, opt, 0, NST2, ST2_OFF)

    QR = 64; KVRAW = 128; KVF = 192; OD = 32
    ACCB = 128; ACCA = 192
    def qr(h, mt): return QR + 8 * h + 4 * mt
    def acc(base, t, mt): return base + (t * 2 + mt) * 16
    items = [("k", k) for k in range(28)] + [("h", h) for h in range(8)]
    if opt.k2order == 1:
        items = [("k", k) for k in range(20)] + [("h", h) for h in range(8)] + [("k", k) for k in range(20, 28)]
    NI = len(items)

    def item_loads(i):
        kind, x = items[i]
        slot = i % NSLOT
        out = []
        if kind == "k":
            def f0():
                A("s_add_u32 m0, s62, %d" % (slot * 2048))
                A("s_lshl4_add_u32 s52, s60, s63")
                A.vmem("buffer_load_dwordx4 v6, s[28:31], s52 offen lds", ("w", i))
            def f1():
                A.vmem("buffer_load_dwordx4 v7, s[28:31], s52 offen offset:1024 lds", ("w", i))
            def f2():
                A.vmem("buffer_load_dwordx4 %s, v1, s[40:43], s60 offen" % ar(8 * x, 4), ("h", i))
            def f3():
                A.vmem("buffer_load_dwordx4 %s, v2, s[40:43], s60 offen" % ar(8 * x + 4, 4), ("h", i))
                A("s_add_u32 s60, s60, 1024")
                A("s_cmp_eq_u32 s60, 28672")
                A("s_cselect_b32 s60, 0, s60")
            def f01(): f0(); f1()
            out = [f01, f2, f3]
        else:
            def f0():
                A("s_add_u32 m0, s62, %d" % (slot * 2048))
                A("s_lshl4_add_u32 s52, s%d, s64" % (70 + x))
                A.vmem("buffer_load_dwordx4 v6, s[24:27], s52 offen lds", ("w", i))
                A.vmem("buffer_load_dwordx4 v7, s[24:27], s52 offen offset:1024 lds", ("w", i))
            out = [f0]
        return out

    for h in range(8):
        A.vmem("buffer_load_dwordx4 %s, v3, s[40:43], s%d offen" % (vr(qr(h, 0), 4), 70 + h), ("q", h, 0))
        A.vmem("buffer_load_dwordx4 %s, v4, s[40:43], s%d offen" % (vr(qr(h, 1), 4), 70 + h), ("q", h, 1))
        A("s_lshl_b32 s52, s%d, 1" % (70 + h))
        A.vmem("buffer_load_dwordx4 %s, v5, s[40:43], s52 offen" % vr(KVRAW + 8 * h, 4), ("kv", h))
        A.vmem("buffer_load_dwordx4 %s, v5, s[40:43], s52 offen offset:16" % vr(KVRAW + 8 * h + 4, 4), ("kv", h))
        if h == 0:
            A.vmem("buffer_load_dwordx2 v[10:11], v9, s[40:43], s23 offen", "g")
            A.vmem("buffer_load_dwordx2 v[12:13], v9, s[40:43], s23 offen offset:256", "g")
    pend = []
    for i in range(NSLOT):
        pend += item_loads(i)
    def pump(maxout=62):
        if pend and len(A.vm) + 2 <= maxout:
            pend.pop(0)(); return True
        return False
    while pump(): pass
    A("v_bfe_u32 v16, v0, 2, 2")
    A("v_and_b32 v17, 3, v0")
    A("v_bfe_u32 v18, v0, 4, 1")
    A("v_lshrrev_b32 v19, 1, v17")
    A("v_lshl_add_u32 v19, v18, 1, v19")
    A("v_and_b32 v20, 1, v16")
    A("v_lshl_add_u32 v19, v20, 2, v19")
    A("v_lshlrev_b32 v19, 4, v19")
    A("v_and_b32 v21, 1, v17")
    A("v_lshl_add_u32 v19, v21, 3, v19")
    A("v_lshl_add_u32 v19, v20, 10, v19")
    A("v_lshrrev_b32 v16, 1, v16")
    A("v_lshl_add_u32 v19, v16, 7, v19")
    A("v_lshl_add_u32 v19, v15, 8, v19")
    A("v_add_u32 v8, s62, v19")
    A("v_xor_b32 v9, 64, v8")
    A("v_mul_u32_u24 v3, 272, v14")
    A("v_lshl_add_u32 v3, v15, 4, v3")
    A("v_add_u32 v3, s62, v3")
    A("v_lshrrev_b32 v16, 3, v0")
    A("s_lshl_b32 s52, s22, 4")
    A("v_add_u32 v16, s52, v16")
    A("v_and_b32 v17, 7, v0")
    A("v_mul_u32_u24 v4, 272, v16")
    A("v_lshl_add_u32 v4, v17, 5, v4")
    A("v_add_u32 v5, %d, v4" % (2 * RING))
    A("v_lshlrev_b32 v17, 4, v17")
    A("v_lshl_add_u32 v0, v16, 10, v17")
    A("s_lshl_b32 s66, s20, 16")
    A("s_lshl_b32 s52, s21, 7")
    A("s_add_u32 s66, s66, s52")
    A("s_add_u32 s67, s66, 8192")
    A("s_mov_b32 s54, 0x%x" % LOG2E)
    A("s_mov_b32 s55, 0x%x" % LOG2E)
    A("s_mov_b32 s56, 0x358637bd")
    A("s_mov_b32 s57, 0xffff0000")

    cnt = [0]
    def V(s):
        A(s); cnt[0] += 1
        if cnt[0] % opt.k2pump == 0: pump()

    def P(h):
        for mt in range(2):
            A.wait(vm={("q", h, mt)})
            q = qr(h, mt)
            for j in range(0, 4, 2):
                for jj in range(2):
                    t = 24 + 2 * jj
                    V("v_lshlrev_b32 v%d, 16, v%d" % (t, q + j + jj))
                    V("v_and_b32 v%d, s57, v%d" % (t + 1, q + j + jj))
                for jj in range(2):
                    t = 24 + 2 * jj; e = 28 + 2 * jj
                    V("v_pk_mul_f32 %s, %s, s[54:55]" % (vr(e, 2), vr(t, 2)))
                for x in range(4):
                    V("v_exp_f32_e64 v%d, v%d clamp" % (28 + x, 28 + x))
                    V("v_max_f32 v%d, s56, v%d" % (24 + x, 24 + x))
                for jj in range(2):
                    t = 24 + 2 * jj; e = 28 + 2 * jj
                    V("v_pk_add_f32 %s, %s, %s" % (vr(t, 2), vr(t, 2), vr(e, 2)))
                for jj in range(2):
                    t = 24 + 2 * jj
                    V("v_cvt_pk_bf16_f32 v%d, v%d, v%d" % (q + j + jj, t, t + 1))
        A.wait(vm={("kv", h)})
        for j in range(4):
            V("v_cvt_pk_bf16_f32 v%d, v%d, v%d" % (KVF + 4 * h + j, KVRAW + 8 * h + 2 * j, KVRAW + 8 * h + 2 * j + 1))
    def M(h):
        for mt in range(2):
            A("v_mfma_f32_32x32x16_bf16 %s, %s, %s, 0" % (vr(OD + 16 * mt, 16), vr(KVF + 4 * h, 4), vr(qr(h, mt), 4)))
    def N(h):
        A.wait(vm={"g"})
        for mt in range(2):
            V("v_add_f32 v%d, s56, v%d" % (14 + 0, OD + 16 * mt + 8)) if mt == 0 else V("v_add_f32 v%d, s56, v%d" % (22, OD + 16 * mt + 8))
        V("v_rcp_f32 v14, v14")
        V("v_rcp_f32 v22, v22")
        V("v_mul_f32 v14, v14, v10")
        V("v_mul_f32 v22, v22, v12")
        for mt in range(2):
            d = OD + 16 * mt; t = (14, 22)[mt]
            for j in range(4):
                V("v_pk_mul_f32 %s, %s, %s op_sel_hi:[1,0]" % (vr(d + 2 * j, 2), vr(d + 2 * j, 2), vr(t, 2)))
            for j in range(4):
                V("v_cvt_pk_bf16_f32 v%d, v%d, v%d" % (qr(h, mt) + j, d + 2 * j, d + 2 * j + 1))
    P(0)
    if opt.stamps: stamp(A, opt, 1, NST2, ST2_OFF)
    M(0)
    for h in range(1, 8):
        P(h); N(h - 1); M(h)
    while pend: pend.pop(0)()

    def wf(i, t): return 16 + (i % 2) * 8 + 4 * t
    def reads(i):
        slot = i % NSLOT
        A.wait(vm={("w", i)})
        for t in range(2):
            for rd in range(2):
                A.lds("ds_read_b64_tr_b16 %s, v%d offset:%d" % (vr(wf(i, t) + 2 * rd, 2), 8 + t, slot * 2048 + rd * 512), ("w", i, t))
    N(7)
    if opt.stamps: stamp(A, opt, 2, NST2, ST2_OFF)
    reads(0)
    seen = set()
    for i in range(NI):
        kind, x = items[i]
        base = ACCB if kind == "k" else ACCA
        first = kind not in seen; seen.add(kind)
        def mm(t, mt):
            A.wait(lg={("w", i, t)})
            b = ar(8 * x + 4 * mt, 4) if kind == "k" else vr(qr(x, mt), 4)
            d = vr(acc(base, t, mt), 16)
            A("v_mfma_f32_32x32x16_bf16 %s, %s, %s, %s" % (d, vr(wf(i, t), 4), b, "0" if first else d))
        if kind == "k": A.wait(vm={("h", i)})
        mm(0, 0); mm(0, 1)
        mm(1, 0)
        if i + 1 < NI: reads(i + 1)
        mm(1, 1)
        if i + NSLOT < NI:
            for f in item_loads(i + NSLOT): f()
    if opt.stamps: stamp(A, opt, 3, NST2, ST2_OFF)
    for t in range(2):
        for mt in range(2):
            a = acc(ACCA, t, mt); b = acc(ACCB, t, mt)
            for j in range(8):
                A("v_pk_fma_f32 %s, %s, %s, %s op_sel:[0,1,0] op_sel_hi:[1,1,1]" % (vr(a + 2 * j, 2), vr(b + 2 * j, 2), vr(10 + 2 * mt, 2), vr(a + 2 * j, 2)))
                if j % 2 == 1:
                    g4 = j // 2
                    A.lds("ds_write_b128 v3, %s offset:%d" % (vr(a + 4 * g4, 4), mt * 8704 + t * 128 + g4 * 32))
    A.wait(lg='all')
    A("s_barrier")
    R = 64
    for rw in range(2):
        for p in range(4):
            for c in range(2):
                A.lds("ds_read_b128 %s, v%d offset:%d" % (vr(R + rw * 32 + p * 8 + c * 4, 4), 4 + (p >> 1), (p & 1) * RING + rw * 2176 + c * 16), ("r", rw, p))
        if rw == 0: pass
    for rw in range(2):
        b = R + rw * 32
        A.wait(lg={("r", rw, 1)})
        for j in range(4):
            A("v_pk_add_f32 %s, %s, %s" % (vr(b + 2 * j, 2), vr(b + 2 * j, 2), vr(b + 8 + 2 * j, 2)))
        A.wait(lg={("r", rw, 3)})
        for j in range(4):
            A("v_pk_add_f32 %s, %s, %s" % (vr(b + 16 + 2 * j, 2), vr(b + 16 + 2 * j, 2), vr(b + 24 + 2 * j, 2)))
        for j in range(4):
            A("v_pk_add_f32 %s, %s, %s" % (vr(b + 2 * j, 2), vr(b + 2 * j, 2), vr(b + 16 + 2 * j, 2)))
        for j in range(4):
            A("v_cvt_pk_bf16_f32 v%d, v%d, v%d" % (b + 8 + j, b + 2 * j, b + 2 * j + 1))
        A.vmem("buffer_store_dwordx4 %s, v0, s[32:35], s%d offen" % (vr(b + 8, 4), 66 + rw))
    if opt.stamps:
        A.wait(vm='all')
        stamp(A, opt, 4, NST2, ST2_OFF)
    A.label("K2_END")
    A("s_endpgm")
    A.lines = hz.fix(A.lines, True)
    return A.text()
```

```python
import re
TRANS = ("v_exp_", "v_rcp_", "v_log_", "v_rsq_", "v_sqrt_", "v_sin_", "v_cos_")
_r = re.compile(r'^([vas])(?:\[(\d+):(\d+)\]|(\d+))$')

def regs(tok):
    tok = tok.strip()
    if tok.startswith('-'): tok = tok[1:]
    tok = tok.strip('|')
    if tok == 'vcc': return {('s', 106), ('s', 107)}
    if tok == 'm0': return {('m', 0)}
    if tok == 'exec': return {('e', 0)}
    m = _r.match(tok)
    if not m: return set()
    k = m.group(1)
    if m.group(4) is not None: return {(k, int(m.group(4)))}
    return {(k, i) for i in range(int(m.group(2)), int(m.group(3)) + 1)}

class I:
    pass

def parse(line):
    s = line.split(';')[0].strip()
    if not s or s.endswith(':') or s.startswith('.'): return None
    p = s.split(None, 1)
    op = p[0]; rest = p[1] if len(p) > 1 else ""
    ops = [o.strip() for o in rest.split(',')] if rest else []
    mods = []
    if ops:
        w = ops[-1].split()
        ops[-1] = w[0]; mods = w[1:]
    x = I(); x.op = op; x.w = set(); x.r = set(); x.kind = 'o'; x.states = 1
    x.c = set(); x.ab = set(); x.wide = set(); x.dma = False; x.trans = False
    if op == 's_nop':
        x.states = int(ops[0]) + 1
    elif op.startswith('v_mfma'):
        x.kind = 'mfma'; x.w = regs(ops[0]); x.ab = regs(ops[1]) | regs(ops[2]); x.c = regs(ops[3]); x.r = x.ab | x.c
        x.passes = 8 if '32x32x16' in op else (4 if '16x16x32' in op else None)
        assert x.passes
    elif op.startswith('v_'):
        x.kind = 'valu'; x.w = regs(ops[0])
        for o in ops[1:]: x.r |= regs(o)
        if op.startswith('v_cmp') and op.endswith('_e32'): pass
        if op.startswith('v_cndmask') and len(ops) == 3: x.r |= regs('vcc')
        if op.startswith('v_fmac') or op.startswith('v_pk_fmac') or op.startswith('v_mac'): x.r |= x.w
        if 'permlane' in op and 'swap' in op:
            x.r |= x.w; x.w |= regs(ops[1])
        x.trans = op.startswith(TRANS)
    elif op.startswith('ds_read') or op.startswith('ds_swizzle') or op.startswith('ds_bpermute'):
        x.kind = 'mem'; x.w = regs(ops[0])
        for o in ops[1:]: x.r |= regs(o)
    elif op.startswith('ds_'):
        x.kind = 'mem'
        for o in ops: x.r |= regs(o)
    elif op.startswith('buffer_load'):
        x.kind = 'mem'
        if 'lds' in mods:
            x.dma = True
            for o in ops: x.r |= regs(o)
            x.r |= regs('m0')
        else:
            x.w = regs(ops[0])
            for o in ops[1:]: x.r |= regs(o)
    elif op.startswith('buffer_'):
        x.kind = 'mem'
        for o in ops: x.r |= regs(o)
        if op.endswith('x3') or op.endswith('x4'): x.wide = regs(ops[0])
    elif op.startswith('s_'):
        x.kind = 'salu'
        if ops and not op.startswith(('s_cmp', 's_cbranch', 's_branch', 's_waitcnt', 's_barrier', 's_endpgm', 's_sleep', 's_setprio')):
            x.w = regs(ops[0])
            for o in ops[1:]: x.r |= regs(o)
    else:
        raise ValueError("unknown instr: " + line)
    return x

def vg(s): return {r for r in s if r[0] in 'va'}
def sg(s): return {r for r in s if r[0] == 's'}

def need(p, c):
    n = 0
    if p.kind == 'valu':
        if c.kind == 'mfma' and (vg(p.w) & c.r): n = max(n, 2)
        if p.trans and c.kind == 'valu' and not c.trans and (p.w & c.r): n = max(n, 1)
        if p.trans and c.kind == 'valu' and c.trans and (p.w & c.r): n = max(n, 1)
        if c.kind == 'valu' and (sg(p.w) & c.r): n = max(n, 2)
        if c.kind == 'mem' and (sg(p.w) & c.r): n = max(n, 5)
        if c.kind == 'valu' and ('readfirstlane' in c.op or 'readlane' in c.op) and (vg(p.w) & c.r): n = max(n, 1)
        if c.kind == 'valu' and 'permlane' in c.op and (vg(p.w) & c.r): n = max(n, 2)
        if c.kind == 'valu' and 'dpp' in c.op and (vg(p.w) & c.r): n = max(n, 2)
        if c.kind == 'salu' and (sg(p.w) & c.r): n = max(n, 1)
    if p.kind == 'mfma':
        big = {4: 8, 8: 12}[p.passes]
        if c.kind == 'mfma':
            if p.w & c.ab: n = max(n, big)
            if p.w & c.c:
                if not (p.w == c.c and p.passes == c.passes): n = max(n, {4: 6, 8: 10}[p.passes])
            elif p.w & c.w: n = max(n, big)
        elif c.kind in ('valu', 'mem'):
            if p.w & (c.r | c.w): n = max(n, big)
            if c.kind == 'valu' and (p.c & c.w): n = max(n, {4: 3, 8: 7}[p.passes])
    if p.kind == 'mem' and p.wide and (p.wide & c.w):
        n = max(n, 2 if c.kind == 'valu' else 1)
    if p.kind == 'salu' and ('m', 0) in p.w and c.dma: n = max(n, 1)
    return n

def fix(lines, verbose=False):
    out = []; hist = []
    nins = 0
    for ln in lines:
        multi = ln.split('\n')
        if len(multi) > 1:
            out.append(ln); hist = []; continue
        x = parse(ln)
        if x is None:
            out.append(ln)
            if ln.strip().endswith(':'):
                pass
            continue
        dist = 0; pad = 0
        for p in reversed(hist):
            n = need(p, x)
            if n > dist: pad = max(pad, n - dist)
            dist += p.states
            if dist >= 20: break
        while pad > 0:
            k = min(pad, 16)
            out.append("    s_nop %d" % (k - 1)); y = parse("s_nop %d" % (k - 1)); hist.append(y); pad -= k; nins += k
        out.append(ln); hist.append(x)
        hist = hist[-24:]
    if verbose: print("hz: inserted %d wait states" % nins)
    return out
```

```python
import sys, argparse

NAME = "gated_mix__linear_attn_block__glu_gated_bilinear__prompt"

H_OFF   = 0x0
Q_OFF   = 0x700000
KVT_OFF = 0x900000
G_OFF   = 0x910000
ST_OFF  = 0x1000000
WS_SIZE = 0x2000000

LOG2E = 0x3fb8aa3b

class Asm:
    def __init__(self):
        self.lines = []
        self.vm = []
        self.lg = []
    def __call__(self, s):
        self.lines.append("    " + s)
    def label(self, s):
        self.lines.append(s + ":")
    def comment(self, s):
        self.lines.append("    ; " + s)
    def raw(self, s):
        self.lines.append(s)
    def vmem(self, s, tag=None):
        if len(self.vm) >= 63:
            self("s_waitcnt vmcnt(62)")
            self.vm = self.vm[-62:]
        self(s); self.vm.append(tag)
    def lds(self, s, tag=None):
        if len(self.lg) >= 15:
            self("s_waitcnt lgkmcnt(14)")
            self.lg = self.lg[-14:]
        self(s); self.lg.append(tag)
    def _need(self, q, tags):
        idx = -1
        for i, t in enumerate(q):
            if t in tags: idx = i
        if idx < 0: return None
        return len(q) - 1 - idx
    def wait(self, vm=None, lg=None):
        parts = []
        if vm is not None:
            n = 0 if vm == 'all' else self._need(self.vm, vm)
            if n is not None and (len(self.vm) > n):
                assert n <= 63
                parts.append("vmcnt(%d)" % n)
                self.vm = self.vm[len(self.vm) - n:] if n else []
        if lg is not None:
            n = 0 if lg == 'all' else self._need(self.lg, lg)
            if n is not None and (len(self.lg) > n):
                assert n <= 15, n
                parts.append("lgkmcnt(%d)" % n)
                self.lg = self.lg[len(self.lg) - n:] if n else []
        if parts:
            self("s_waitcnt " + " ".join(parts))
    def text(self):
        return "\n".join(self.lines) + "\n"

def vr(a, n): return "v[%d:%d]" % (a, a + n - 1) if n > 1 else "v%d" % a
def ar(a, n): return "a[%d:%d]" % (a, a + n - 1) if n > 1 else "a%d" % a
def sr(a, n): return "s[%d:%d]" % (a, a + n - 1) if n > 1 else "s%d" % a

def srd(A, d, lo, size):
    A("s_mov_b32 s%d, s%d" % (d, lo))
    A("s_and_b32 s%d, s%d, 0xffff" % (d + 1, lo + 1))
    A("s_mov_b32 s%d, 0x%x" % (d + 2, size))
    A("s_mov_b32 s%d, 0x20000" % (d + 3))

def stamp(A, opt, idx, nst, base, wgreg="s2", cond_wave=None):
    if not opt.stamps: return
    A("s_memrealtime s[90:91]")
    A("s_waitcnt lgkmcnt(0)")
    A.lg = []
    A("v_mov_b32 v254, s90") if False else None
    A("s_mul_i32 s92, %s, %d" % (wgreg, nst * 8))
    A("s_add_u32 s92, s92, 0x%x" % (base + idx * 8))
    A("v_mov_b32 v%d, s90" % opt.stv)
    A("v_mov_b32 v%d, s91" % (opt.stv + 1))
    A.vmem("buffer_store_dwordx2 v[%d:%d], off, s[40:43], s92" % (opt.stv, opt.stv + 1), "stamp")

XB = 0
WB = 98304
K1_LDS = WB + 3 * 20480
NST1 = 16

def k1(opt):
    A = Asm()
    A.raw(".globl k1_kernel\n.p2align 8\n.type k1_kernel,@function\nk1_kernel:")
    A("s_cmp_ge_u32 s2, 256")
    A("s_cbranch_scc1 K1_END")
    A("s_load_dwordx4 s[4:7], s[0:1], 0")
    A("s_load_dwordx4 s[8:11], s[0:1], 32")
    A("s_load_dwordx2 s[12:13], s[0:1], 56")
    A("s_load_dwordx4 s[16:19], s[0:1], 72")
    A("s_and_b32 s20, s2, 7")
    A("s_lshr_b32 s21, s2, 3")
    if opt.k1map == 0:
        A("s_and_b32 s52, s20, 1")
        A("s_lshl_b32 s52, s52, 2")
        A("s_and_b32 s53, s21, 3")
        A("s_lshr_b32 s54, s20, 1")
        A("s_lshl_b32 s54, s54, 3")
        A("s_lshr_b32 s55, s21, 2")
        A("s_add_u32 s20, s52, s53")
        A("s_add_u32 s21, s54, s55")
    else:
        pass
    A("v_lshrrev_b32 v1, 6, v0")
    A("v_and_b32 v0, 63, v0")
    A("s_nop 0")
    A("v_readfirstlane_b32 s22, v1")
    A("s_waitcnt lgkmcnt(0)")
    srd(A, 24, 4, 2048 * 512 * 2)
    srd(A, 36, 6, 512 * 1536 * 2)
    srd(A, 40, 18, WS_SIZE)
    srd(A, 44, 16, 256)
    srd(A, 48, 12, 1024)
    A("s_cmp_lt_u32 s21, 28")
    A("s_cselect_b32 s28, s8, s6")
    A("s_cselect_b32 s29, s9, s7")
    A("s_cselect_b32 s32, s10, s6")
    A("s_cselect_b32 s33, s11, s7")
    A("s_cselect_b32 s30, 0x%x, 0x%x" % (512 * 1792 * 2, 512 * 1536 * 2)) if False else None
    A("s_mov_b32 s56, 0x%x" % (512 * 1792 * 2))
    A("s_mov_b32 s57, 0x%x" % (512 * 1536 * 2))
    A("s_cselect_b32 s30, s56, s57")
    A("s_cselect_b32 s34, s56, s57")
    A("s_movk_i32 s56, 3584")
    A("s_movk_i32 s57, 3072")
    A("s_cselect_b32 s58, s56, s57")
    A("s_and_b32 s29, s29, 0xffff")
    A("s_and_b32 s33, s33, 0xffff")
    A("s_mov_b32 s31, 0x20000")
    A("s_mov_b32 s35, 0x20000")
    A("s_cmp_ge_u32 s22, 4")
    A("s_cbranch_scc1 K1_LOADER")

    opt.stv = 72
    stamp(A, opt, 0, NST1, ST_OFF) if False else None
    A("v_and_b32 v8, 31, v0")
    A("v_lshrrev_b32 v9, 5, v0")
    A("v_bfe_u32 v10, v0, 1, 3")
    A("v_xor_b32 v10, v10, v9")
    A("v_lshlrev_b32 v10, 4, v10")
    A("v_lshl_add_u32 v10, v8, 7, v10")
    A("s_mul_i32 s52, s22, 24576")
    A("v_add_u32 v1, s52, v10")
    A("v_xor_b32 v2, 32, v1")
    A("v_xor_b32 v3, 64, v1")
    A("v_xor_b32 v4, 96, v1")
    A("v_bfe_u32 v10, v0, 2, 2")
    A("v_and_b32 v11, 3, v0")
    A("v_bfe_u32 v12, v0, 4, 1")
    A("v_lshrrev_b32 v13, 1, v11")
    A("v_lshl_add_u32 v13, v12, 1, v13")
    A("v_bfe_u32 v14, v0, 3, 1")
    A("v_lshlrev_b32 v14, 2, v14")
    A("v_xor_b32 v13, v13, v14")
    A("v_lshlrev_b32 v13, 4, v13")
    A("v_and_b32 v14, 1, v11")
    A("v_lshl_add_u32 v13, v14, 3, v13")
    A("v_lshl_add_u32 v13, v10, 7, v13")
    A("v_lshl_add_u32 v13, v9, 10, v13")
    A("v_add_u32 v5, 0x%x, v13" % WB)
    A("v_xor_b32 v6, 64, v5")
    A("v_lshlrev_b32 v13, 3, v11")
    A("v_lshl_add_u32 v13, v12, 5, v13")
    A("v_lshl_add_u32 v13, v10, 6, v13")
    A("v_lshl_add_u32 v13, v9, 9, v13")
    A("v_add_u32 v7, 0x%x, v13" % (WB + 16384))

    ACC = 96
    def acc(mt, t): return ACC + (mt * 5 + t) * 16
    FR = [16, 44]
    def xf(st, mt): return FR[st] + mt * 4
    def wf(st, t): return FR[st] + 8 + t * 4

    def reads_for(n):
        s, ks = divmod(n, 4); slot = s % 3; st = n % 2
        out = []
        def xr(mt):
            out.append(("ds_read_b128 %s, v%d offset:%d" % (vr(xf(st, mt), 4), 1 + ks, slot * 8192 + mt * 4096), ("x", n, mt)))
        def wr(t):
            for rd in range(2):
                if t < 4:
                    off = slot * 20480 + ks * 2048 + rd * 512 + (8192 if t >= 2 else 0)
                    a = 5 + (t & 1)
                else:
                    off = slot * 20480 + ks * 1024 + rd * 256
                    a = 7
                out.append(("ds_read_b64_tr_b16 %s, v%d offset:%d" % (vr(wf(st, t) + 2 * rd, 2), a, off), ("w", n, t)))
        xr(0); wr(0); xr(1); wr(1); wr(2); wr(3); wr(4)
        return out

    def mfma(n, mt, t):
        st = n % 2
        c = "0" if n == 0 else vr(acc(mt, t), 16)
        if t < 4:
            return "v_mfma_f32_32x32x16_bf16 %s, %s, %s, %s" % (vr(acc(mt, t), 16), vr(wf(st, t), 4), vr(xf(st, mt), 4), c)
        return "v_mfma_f32_32x32x16_bf16 %s, %s, %s, %s" % (vr(acc(mt, t), 16), vr(xf(st, mt), 4), vr(wf(st, t), 4), c)

    if opt.stamps:
        stamp(A, opt, 0, NST1, ST_OFF)
    A("s_barrier")
    if opt.stamps:
        stamp(A, opt, 1, NST1, ST_OFF)
    for (s_, tg) in reads_for(0):
        A.lds(s_, tg)
    NK = 32
    for n in range(NK):
        s, ks = divmod(n, 4)
        nxt = reads_for(n + 1) if n + 1 < NK else []
        order = [(mt, t) for t in range(5) for mt in range(2)]
        need_bar = (ks == 3 and n + 1 < NK)
        A.comment("kstep %d" % n)
        for i, (mt, t) in enumerate(order):
            if need_bar and i == 0:
                A.wait(lg='all')
            else:
                A.wait(lg={("x", n, mt), ("w", n, t)})
            if not opt.nomfma:
                A(mfma(n, mt, t))
            if need_bar and i == 0:
                A("s_barrier")
            k = 0
            while nxt and k < 2:
                s_, tg = nxt.pop(0)
                A.lds(s_, tg); k += 1
    if opt.stamps:
        stamp(A, opt, 2, NST1, ST_OFF)
    A("s_nop 7"); A("s_nop 3")
    A("v_and_b32 v8, 16, v0")
    A("v_cmp_eq_u32 vcc, 0, v8")
    A("s_mov_b32 s52, 0x%x" % LOG2E)
    A("s_mov_b32 s53, 0x358637bd")
    A("v_mov_b32 v9, 0x3f803f80")
    for mt in range(2):
        a = acc(mt, 4)
        for r in range(0, 16, 2):
            t0, t1 = 72 + (r % 8), 73 + (r % 8)
            A("v_mul_f32 v%d, s52, v%d" % (t0, a + r))
            A("v_mul_f32 v%d, s52, v%d" % (t1, a + r + 1))
            A("v_exp_f32_e64 v%d, v%d clamp" % (t0, t0))
            A("v_exp_f32_e64 v%d, v%d clamp" % (t1, t1))
            A("v_max_f32 v80, 0, v%d" % (a + r))
            A("v_max_f32 v81, 0, v%d" % (a + r + 1))
            A("v_add_f32 v%d, v%d, v80" % (t0, t0))
            A("v_add_f32 v%d, v%d, v81" % (t1, t1))
            A("v_add_f32 v%d, s53, v%d" % (t0, t0))
            A("v_add_f32 v%d, s53, v%d" % (t1, t1))
            A("v_cndmask_b32 v%d, v%d, v%d, vcc" % (t0, a + r, t0))
            A("v_cndmask_b32 v%d, v%d, v%d, vcc" % (t1, a + r + 1, t1))
            p = 16 + mt * 8 + r // 2
            A("v_cvt_pk_bf16_f32 v%d, v%d, v%d" % (p, t0, t1))
            A("v_cndmask_b32 v%d, v%d, v9, vcc" % (p + 16, p))
    A("s_nop 1")
    KD = 48
    for i in range(4):
        c = "0" if i == 0 else vr(KD, 16)
        A("v_mfma_f32_32x32x16_bf16 %s, %s, %s, %s" % (vr(KD, 16), vr(32 + 4 * i, 4), vr(16 + 4 * i, 4), c))
    PB = WB + 2 * 20480
    A("v_and_b32 v8, 31, v0")
    A("v_lshrrev_b32 v10, 5, v0")
    A("v_lshlrev_b32 v8, 2, v8")
    A("v_lshl_add_u32 v8, v10, 9, v8")
    A("s_lshl_b32 s54, s22, 12")
    A("s_add_u32 s54, s54, 0x%x" % PB)
    A("v_add_u32 v8, s54, v8")
    A("s_nop 7")
    for r in range(8, 16):
        e = 8 * ((r - 8) // 4) + (r % 4)
        A.lds("ds_write_b32 v8, v%d offset:%d" % (KD + r, e * 128))
    A.lds("ds_write_b32 v8, v%d offset:%d" % (KD, 16 * 128))
    A.wait(lg='all')
    A("s_barrier")
    A("v_lshlrev_b32 v8, 4, v0")
    A("s_lshl_b32 s54, s20, 3")
    A("s_lshl_b32 s55, s22, 1")
    A("s_add_u32 s54, s54, s55")
    A("s_cmp_ge_u32 s21, 28")
    A("s_cbranch_scc1 K1_QEPI")
    A("s_mul_i32 s55, s54, 114688")
    A("s_lshl_b32 s56, s21, 12")
    A("s_add_u32 s55, s55, s56")
    A("s_add_u32 s56, s55, 114688")
    pbase = 16
    for mt in range(2):
        for tp in range(2):
            g, u = acc(mt, tp), acc(mt, 2 + tp)
            for i in range(8):
                A("v_pk_mul_f32 %s, %s, %s" % (vr(g + 2 * i, 2), vr(g + 2 * i, 2), vr(u + 2 * i, 2)))
            p = pbase + (mt * 2 + tp) * 8
            for i in range(8):
                A("v_cvt_pk_bf16_f32 v%d, v%d, v%d" % (p + i, g + 2 * i, g + 2 * i + 1))
            for half in range(2):
                A.vmem("buffer_store_dwordx4 %s, v8, s[40:43], s%d offen offset:%d" % (vr(p + 4 * half, 4), 55 + mt, (2 * tp + half) * 1024))
    if opt.stamps:
        A.wait(vm='all')
        stamp(A, opt, 3, NST1, ST_OFF)
    A("s_endpgm")
    A.label("K1_QEPI")
    A.vm = []
    A("s_lshl_b32 s55, s54, 15")
    A("s_sub_u32 s56, s21, 28")
    A("s_lshl_b32 s56, s56, 13")
    A("s_add_u32 s55, s55, s56")
    A("s_add_u32 s55, s55, 0x%x" % Q_OFF)
    A("s_add_u32 s56, s55, 4096")
    A("s_add_u32 s57, s55, 32768")
    A("s_add_u32 s58, s57, 4096")
    for mt in range(2):
        for t in range(4):
            g = acc(mt, t)
            p = 16 + ((mt * 4 + t) % 8) * 8
            for i in range(8):
                A("v_cvt_pk_bf16_f32 v%d, v%d, v%d" % (p + i, g + 2 * i, g + 2 * i + 1))
            for half in range(2):
                A.vmem("buffer_store_dwordx4 %s, v8, s[40:43], s%d offen offset:%d" % (vr(p + 4 * half, 4), 55 + mt * 2 + (t >> 1), ((2 * t + half) % 4) * 1024))
    if opt.stamps:
        A.wait(vm='all')
        stamp(A, opt, 3, NST1, ST_OFF)
    A("s_endpgm")

    A.label("K1_LOADER")
    A.vm = []; A.lg = []
    opt.stv = 40
    A("s_sub_u32 s22, s22, 4")
    A("v_lshrrev_b32 v2, 3, v0")
    A("v_and_b32 v3, 7, v0")
    A("v_lshrrev_b32 v4, 4, v0")
    A("v_xor_b32 v5, v3, v4")
    A("v_lshlrev_b32 v5, 4, v5")
    A("v_lshl_add_u32 v10, v2, 10, v5")
    A("v_xor_b32 v11, 64, v10")
    A("v_and_b32 v6, 1, v4")
    A("v_lshlrev_b32 v6, 2, v6")
    A("v_xor_b32 v6, v3, v6")
    A("v_lshlrev_b32 v6, 4, v6")
    A("v_mad_u32_u24 v12, v2, s58, v6")
    A("v_lshrrev_b32 v2, 2, v0")
    A("v_bfe_u32 v3, v0, 1, 1")
    A("v_and_b32 v4, 1, v0")
    A("v_lshlrev_b32 v4, 4, v4")
    A("v_lshl_add_u32 v4, v3, 10, v4")
    A("v_add_u32 v4, 1024, v4")
    A("s_movk_i32 s52, 3072")
    A("v_mad_u32_u24 v13, v2, s52, v4")
    A("s_lshl_b32 s60, s20, 18")
    A("s_lshl_b32 s52, s22, 16")
    A("s_add_u32 s60, s60, s52")
    A("s_lshl_b32 s52, s21, 7")
    A("s_sub_u32 s53, s21, 28")
    A("s_lshl_b32 s53, s53, 8")
    A("s_add_u32 s54, s53, 128")
    A("s_cmp_lt_u32 s21, 28")
    A("s_cselect_b32 s61, s52, s53")
    A("s_cselect_b32 s62, s52, s54")
    A("s_lshl_b32 s52, s22, 4")
    A("s_mul_i32 s53, s52, s58")
    A("s_add_u32 s61, s61, s53")
    A("s_add_u32 s62, s62, s53")
    A("s_mul_i32 s63, s52, 3072")
    A("s_lshl_b32 s53, s21, 5")
    A("s_add_u32 s63, s63, s53")
    A("s_lshl_b32 s64, s58, 3")
    A("s_lshl_b32 s65, s58, 6")
    A("s_mul_i32 s66, s22, 24576")
    A("s_lshl_b32 s67, s22, 11")
    A("s_add_u32 s67, s67, 0x%x" % WB)
    A("s_lshl_b32 s68, s22, 10")
    A("s_add_u32 s68, s68, 0x%x" % (WB + 16384))

    def issue_stage(s):
        slot = s % 3
        tag = ("st", s)
        for (sreg, srdn, ldsoff) in ((61, 28, 0), (62, 32, 8192)):
            A("s_add_u32 m0, s67, %d" % (slot * 20480 + ldsoff))
            A("s_add_u32 s52, s%d, s64" % sreg)
            A.vmem("buffer_load_dwordx4 v12, s[%d:%d], s%d offen lds" % (srdn, srdn + 3, sreg), tag)
            A("s_add_u32 m0, s67, %d" % (slot * 20480 + ldsoff + 1024))
            A("s_add_u32 s%d, s%d, s65" % (sreg, sreg))
            A.vmem("buffer_load_dwordx4 v12, s[%d:%d], s52 offen lds" % (srdn, srdn + 3), tag)
        A("s_add_u32 m0, s68, %d" % (slot * 20480))
        A("s_nop 0")
        A.vmem("buffer_load_dwordx4 v13, s[36:39], s63 offen lds", tag)
        A("s_add_u32 s63, s63, %d" % (64 * 3072))
        for a in range(8):
            A("s_add_u32 m0, s66, %d" % (slot * 8192 + a * 1024))
            A("s_add_u32 s52, s60, %d" % (a * 8192 + 128 * s))
            A.vmem("buffer_load_dwordx4 v%d, s[24:27], s52 offen lds" % (10 + (a & 1)), tag)

    if opt.stamps:
        stamp(A, opt, 4, NST1, ST_OFF)
    issue_stage(0)
    A("v_lshrrev_b32 v2, 5, v0")
    A("v_and_b32 v3, 31, v0")
    A("v_lshlrev_b32 v3, 5, v3")
    A("v_lshl_add_u32 v4, v2, 10, v3")
    A("s_lshl_b32 s69, s20, 8")
    A("s_lshl_b32 s52, s21, 3")
    A("s_add_u32 s69, s69, s52")
    A("s_lshl_b32 s52, s22, 1")
    A("s_add_u32 s69, s69, s52")
    A("s_lshl_b32 s52, s69, 10")
    A.vmem("buffer_load_dwordx4 v[16:19], v4, s[24:27], s52 offen", "g")
    A.vmem("buffer_load_dwordx4 v[20:23], v4, s[24:27], s52 offen offset:16", "g")
    A.vmem("buffer_load_dwordx4 v[24:27], v3, s[48:51], 0 offen", "g")
    A.vmem("buffer_load_dwordx4 v[28:31], v3, s[48:51], 0 offen offset:16", "g")
    A("v_lshlrev_b32 v14, 4, v0")
    A("s_lshl_b32 s70, s21, 11")
    A("s_add_u32 s70, s70, 0x%x" % KVT_OFF)
    A("s_or_b32 s71, s20, s22")
    A("v_mov_b32 v32, 0"); A("v_mov_b32 v33, 0"); A("v_mov_b32 v34, 0"); A("v_mov_b32 v35, 0")
    A("s_cmp_lg_u32 s71, 0")
    A("s_cbranch_scc1 K1_NOZERO")
    A("buffer_store_dwordx4 v[32:35], v14, s[40:43], s70 offen sc0 sc1")
    A("buffer_store_dwordx4 v[32:35], v14, s[40:43], s70 offen offset:1024 sc0 sc1")
    A("s_nop 1")
    A.label("K1_NOZERO")
    issue_stage(1)
    issue_stage(2)
    if opt.stamps:
        stamp(A, opt, 5, NST1, ST_OFF)
    A.wait(vm={"g"})
    if opt.stamps:
        stamp(A, opt, 7, NST1, ST_OFF)
    accv = 36
    first = True
    for i in range(8):
        xr_, wr_ = 16 + i, 24 + i
        A("v_lshlrev_b32 v32, 16, v%d" % xr_)
        A("v_and_b32 v33, 0xffff0000, v%d" % xr_)
        A("v_lshlrev_b32 v34, 16, v%d" % wr_)
        A("v_and_b32 v35, 0xffff0000, v%d" % wr_)
        A("v_mul_f32 v32, v32, v34")
        A("v_mul_f32 v33, v33, v35")
        A("v_cvt_pk_bf16_f32 v32, v32, v33")
        A("v_and_b32 v33, 0xffff0000, v32")
        A("v_lshlrev_b32 v32, 16, v32")
        if first:
            A("v_add_f32 v%d, v32, v33" % accv); first = False
        else:
            A("v_add_f32 v%d, v%d, v32" % (accv, accv))
            A("v_add_f32 v%d, v%d, v33" % (accv, accv))
    for off in (0x041F, 0x081F, 0x101F, 0x201F, 0x401F):
        A("ds_swizzle_b32 v32, v%d offset:0x%x" % (accv, off))
        A("s_waitcnt lgkmcnt(0)")
        A("v_add_f32 v%d, v%d, v32" % (accv, accv))
    A("v_cvt_pk_bf16_f32 v32, v%d, v%d" % (accv, accv))
    A("v_lshlrev_b32 v32, 16, v32")
    A("v_mul_f32 v32, 0xbfb8aa3b, v32")
    A("v_exp_f32 v32, v32")
    A("s_nop 0")
    A("v_add_f32 v32, 1.0, v32")
    A("v_rcp_f32 v32, v32")
    A("s_nop 0")
    A("v_cvt_pk_bf16_f32 v32, v32, v32")
    A("v_lshlrev_b32 v32, 16, v32")
    A("v_sub_f32 v33, 1.0, v32")
    A("v_cvt_pk_bf16_f32 v33, v33, v33")
    A("v_lshlrev_b32 v33, 16, v33")
    A("v_lshrrev_b32 v2, 5, v0")
    A("v_lshlrev_b32 v2, 3, v2")
    A("s_lshl_b32 s52, s69, 3")
    A("s_add_u32 s52, s52, 0x%x" % G_OFF)
    A.vmem("buffer_store_dwordx2 v[32:33], v2, s[40:43], s52 offen", "gst")
    for s in range(8):
        A.wait(vm={("st", s)})
        if opt.stamps:
            stamp(A, opt, 8 + s, NST1, ST_OFF)
        A("s_barrier")
        if s >= 1 and s + 2 <= 7:
            issue_stage(s + 2)
        if s == 1:
            A("s_cmp_lg_u32 s71, 0")
            A("s_cbranch_scc1 K1_NOFLAG")
            A("v_mov_b32 v37, 1")
            A("s_lshl_b32 s52, s21, 2")
            A("buffer_store_dword v37, off, s[44:47], s52 sc0 sc1")
            A.label("K1_NOFLAG")
        if s == 5:
            A("s_lshl_b32 s52, s21, 2")
            A.vmem("buffer_load_dword v36, off, s[44:47], s52 sc0 sc1", "flag")
    A("s_lshl_b32 s52, s22, 6")
    A("v_add_u32 v2, s52, v0")
    A("v_lshrrev_b32 v3, 4, v2")
    A("v_and_b32 v4, 3, v2")
    A("v_bfe_u32 v5, v2, 2, 1")
    A("v_bfe_u32 v6, v2, 3, 1")
    A("v_lshl_add_u32 v4, v5, 3, v4")
    A("v_lshl_add_u32 v4, v6, 2, v4")
    A("v_lshlrev_b32 v4, 2, v4")
    A("v_lshl_add_u32 v5, v3, 7, v4")
    A("v_add_u32 v5, 0x%x, v5" % PB)
    A("v_add_u32 v6, 0x%x, v4" % (PB + 16 * 128))
    A("v_lshlrev_b32 v7, 2, v2")
    A.wait(vm='all')
    A.label("K1_POLL")
    A("v_readfirstlane_b32 s52, v36")
    A("s_cmp_lg_u32 s52, 0")
    A("s_cbranch_scc1 K1_POLLED")
    A("s_sleep 1")
    A("s_lshl_b32 s52, s21, 2")
    A("buffer_load_dword v36, off, s[44:47], s52 sc0 sc1")
    A("s_waitcnt vmcnt(0)")
    A("s_branch K1_POLL")
    A.label("K1_POLLED")
    A("s_barrier")
    for w in range(4):
        A("ds_read_b32 v%d, v5 offset:%d" % (16 + w, w * 4096))
    for w in range(4):
        A("ds_read_b32 v%d, v6 offset:%d" % (20 + w, w * 4096))
    A("s_waitcnt lgkmcnt(0)")
    A("v_add_f32 v16, v16, v17"); A("v_add_f32 v18, v18, v19"); A("v_add_f32 v16, v16, v18")
    A("v_add_f32 v20, v20, v21"); A("v_add_f32 v22, v22, v23"); A("v_add_f32 v20, v20, v22")
    A("buffer_atomic_add_f32 v16, v7, s[40:43], s70 offen")
    A("v_cmp_gt_u32 vcc, 16, v2")
    A("s_and_saveexec_b64 s[52:53], vcc")
    A("s_cbranch_execz K1_NOZ")
    A("buffer_atomic_add_f32 v20, v7, s[40:43], s70 offen offset:1024")
    A.label("K1_NOZ")
    A("s_mov_b64 exec, s[52:53]")
    if opt.stamps:
        A("s_waitcnt vmcnt(0)")
        stamp(A, opt, 6, NST1, ST_OFF)
    A.label("K1_END")
    A("s_endpgm")
    return A.text()

def kd(name, vgpr, sgpr, accum):
    return """.p2align 6
.amdhsa_kernel %s
  .amdhsa_next_free_vgpr %d
  .amdhsa_next_free_sgpr %d
  .amdhsa_accum_offset %d
  .amdhsa_group_segment_fixed_size 0
  .amdhsa_kernarg_size 88
  .amdhsa_user_sgpr_count 2
  .amdhsa_user_sgpr_kernarg_segment_ptr 1
  .amdhsa_system_sgpr_workgroup_id_x 1
  .amdhsa_float_denorm_mode_32 3
.end_amdhsa_kernel
""" % (name, vgpr, sgpr, accum)

HEADER = open("cdna_kernels/%s.s.ref" % NAME).read().split("; Override launch")[0]

def main():
    ap = argparse.ArgumentParser()
    ap.add_argument("-o", default="out.s")
    ap.add_argument("--stamps", action="store_true")
    ap.add_argument("--nomfma", action="store_true")
    ap.add_argument("--k1map", type=int, default=0)
    ap.add_argument("--k2map", type=int, default=0)
    ap.add_argument("--only", type=str, default="")
    ap.add_argument("--k2rot", type=int, default=1)
    ap.add_argument("--k2order", type=int, default=0)
    ap.add_argument("--k2pump", type=int, default=8)
    opt = ap.parse_args()
    out = HEADER
    launches = []
    if opt.only != "k2":
        launches.append("; @launch kernel=k1_kernel grid=(256,1,1) block=(512,1,1) lds=%d" % K1_LDS)
    if opt.only != "k1":
        import gen2
        launches.append("; @launch kernel=k2_kernel grid=(256,1,1) block=(256,1,1) lds=%d" % gen2.K2_LDS)
    out += "\n".join(launches) + "\n"
    out += '.amdgcn_target "amdgcn-amd-amdhsa--gfx950"\n.text\n'
    if opt.only != "k2":
        out += k1(opt)
    if opt.only != "k1":
        out += gen2.k2(opt)
    out += '.section .rodata,"a"\n'
    if opt.only != "k2":
        out += kd("k1_kernel", 256, 96, 256)
    if opt.only != "k1":
        out += kd("k2_kernel", 512, 96, 256)
    open(opt.o, "w").write(out)

if __name__ == "__main__":
    main()
```

```python
from gen import *
import hz

NSLOT = 11
FRING = NSLOT * 2048
AREG = 18432
K2_LDS = 4 * FRING + 4 * AREG
K2_THREADS = 512
K2_VGPR = 256
NST2 = 8
ST2_OFF = ST_OFF + 0x100000

def k2(opt):
    A = Asm()
    A.raw(".globl k2_kernel\n.p2align 8\n.type k2_kernel,@function\nk2_kernel:")
    A("s_cmp_ge_u32 s2, 256")
    A("s_cbranch_scc1 K2_END")
    A("s_load_dwordx2 s[12:13], s[0:1], 80")
    A("s_load_dwordx2 s[6:7], s[0:1], 48")
    A("s_load_dwordx2 s[4:5], s[0:1], 16")
    A("s_load_dwordx2 s[8:9], s[0:1], 64")
    A("s_and_b32 s52, s2, 7")
    A("s_lshr_b32 s53, s2, 3")
    if opt.k2map == 0:
        A("s_and_b32 s54, s53, 3")
        A("s_lshr_b32 s55, s53, 2")
        A("s_lshl2_add_u32 s20, s52, s54")
        A("s_mov_b32 s21, s55")
    else:
        A("s_and_b32 s55, s53, 7")
        A("s_lshr_b32 s54, s53, 3")
        if opt.k2map == 1:
            A("s_lshr_b32 s56, s52, 1")
            A("s_lshl3_add_u32 s20, s56, s55")
            A("s_and_b32 s56, s52, 1")
            A("s_lshl2_add_u32 s21, s56, s54")
        else:
            A("s_and_b32 s56, s52, 1")
            A("s_lshl_b32 s56, s56, 1")
            A("s_bfe_u32 s57, s52, 0x10001")
            A("s_add_u32 s56, s56, s57")
            A("s_lshl3_add_u32 s20, s56, s55")
            A("s_lshr_b32 s56, s52, 2")
            A("s_lshl2_add_u32 s21, s56, s54")
    A("v_lshrrev_b32 v1, 6, v0")
    A("v_and_b32 v0, 63, v0")
    A("v_readfirstlane_b32 s23, v1")
    A("v_lshlrev_b32 v9, 4, v0")
    A("v_and_b32 v14, 31, v0")
    A("v_lshrrev_b32 v15, 5, v0")
    A("s_and_b32 s22, s23, 3")
    A("v_lshrrev_b32 v16, 3, v0")
    A("v_and_b32 v17, 7, v0")
    A("v_lshlrev_b32 v17, 4, v17")
    A("v_lshl_add_u32 v17, v16, 11, v17")
    A("s_lshl_b32 s52, s21, 7")
    A("v_add_u32 v6, s52, v17")
    A("v_xor_b32 v7, 64, v6")
    A("s_lshl_b32 s52, s20, 9")
    A("s_add_u32 s65, s52, 0x%x" % G_OFF)
    A("v_lshlrev_b32 v8, 3, v14")
    A("s_waitcnt lgkmcnt(0)")
    srd(A, 40, 12, WS_SIZE)
    srd(A, 32, 8, 2048 * 512 * 2)
    opt.stv = 30
    ACC = 192
    def acc(t, mt): return ACC + (t * 2 + mt) * 16

    def lds_addrs():
        A("v_bfe_u32 v16, v0, 2, 2")
        A("v_and_b32 v17, 3, v0")
        A("v_bfe_u32 v18, v0, 4, 1")
        A("v_lshrrev_b32 v19, 1, v17")
        A("v_lshl_add_u32 v19, v18, 1, v19")
        A("v_and_b32 v20, 1, v16")
        A("v_lshl_add_u32 v19, v20, 2, v19")
        A("v_lshlrev_b32 v19, 4, v19")
        A("v_and_b32 v21, 1, v17")
        A("v_lshl_add_u32 v19, v21, 3, v19")
        A("v_lshl_add_u32 v19, v20, 10, v19")
        A("v_lshrrev_b32 v16, 1, v16")
        A("v_lshl_add_u32 v19, v16, 7, v19")
        A("v_lshl_add_u32 v19, v15, 8, v19")
        A("v_add_u32 v8, s62, v19")
        A("v_xor_b32 v9, 64, v8")
        A("v_mul_u32_u24 v14, 272, v14")
        A("v_lshl_add_u32 v14, v15, 4, v14")
        A("v_add_u32 v15, s62, v14")

    def tr_reads(slot, dst, tag):
        for t in range(2):
            for rd in range(2):
                A.lds("ds_read_b64_tr_b16 %s, v%d offset:%d" % (vr(dst + 4 * t + 2 * rd, 2), 8 + t, slot * 2048 + rd * 512), tag + (t,))

    def write_partial(scale):
        for t in range(2):
            for mt in range(2):
                a = acc(t, mt)
                for g4 in range(4):
                    if scale:
                        for j in range(4):
                            A("v_mul_f32 v%d, v%d, v%d" % (a + 4 * g4 + j, a + 4 * g4 + j, 11 + 2 * mt))
                    A.lds("ds_write_b128 v15, %s offset:%d" % (vr(a + 4 * g4, 4), mt * 8704 + t * 128 + g4 * 32))

    A("s_cmp_ge_u32 s23, 4")
    A("s_cbranch_scc1 K2_ATT")
    srd(A, 28, 6, 1792 * 512 * 2)
    if opt.k2rot:
        A("s_mul_i32 s56, s54, 7")
        A("s_mul_i32 s57, s55, 7")
        A("s_lshr_b32 s57, s57, 1")
        A("s_add_u32 s56, s56, s57")
        A("s_sub_u32 s57, s56, 28")
        A("s_cmp_ge_u32 s56, 28")
        A("s_cselect_b32 s56, s57, s56")
        A("s_lshl_b32 s60, s56, 10")
    else:
        A("s_mov_b32 s60, 0")
    A("s_mul_i32 s52, s20, %d" % (2 * 114688))
    A("s_mul_i32 s53, s22, 28672")
    A("s_add_u32 s52, s52, s53")
    if H_OFF: A("s_add_u32 s52, s52, 0x%x" % H_OFF)
    A("v_add_u32 v1, s52, v9")
    A("v_add_u32 v2, 114688, v1")
    A("s_mul_i32 s63, s22, %d" % (28 * 16384))
    A("s_mul_i32 s62, s22, %d" % FRING)
    if opt.stamps: stamp(A, opt, 0, NST2, ST2_OFF); clk_begin(A, opt)
    HR = 96
    def hreg(i, mt): return HR + (i % NSLOT) * 8 + 4 * mt
    def ffn_loads(i):
        slot = i % NSLOT
        A("s_add_u32 m0, s62, %d" % (slot * 2048))
        A("s_lshl4_add_u32 s52, s60, s63")
        A.vmem("buffer_load_dwordx4 v6, s[28:31], s52 offen lds", ("w", i))
        A.vmem("buffer_load_dwordx4 v7, s[28:31], s52 offen offset:1024 lds", ("w", i))
        A.vmem("buffer_load_dwordx4 %s, v1, s[40:43], s60 offen" % vr(hreg(i, 0), 4), ("h", i))
        A.vmem("buffer_load_dwordx4 %s, v2, s[40:43], s60 offen" % vr(hreg(i, 1), 4), ("h", i))
        A("s_add_u32 s60, s60, 1024")
        A("s_cmp_eq_u32 s60, 28672")
        A("s_cselect_b32 s60, 0, s60")
    DEP = opt.k2dep
    assert DEP <= NSLOT
    for i in range(DEP):
        ffn_loads(i)
        if i == 0:
            A.vmem("buffer_load_dwordx2 v[10:11], v8, s[40:43], s65 offen", "g")
            A.vmem("buffer_load_dwordx2 v[12:13], v8, s[40:43], s65 offen offset:256", "g")
            lds_addrs()
    if opt.stamps: clk_end(A, opt, 6, NST2, ST2_OFF); stamp(A, opt, 1, NST2, ST2_OFF); clk_begin(A, opt)
    def wf(i): return 16 + (i % 2) * 8
    A.wait(vm={("w", 0)})
    tr_reads(0, wf(0), ("w", 0))
    NI = 28
    for i in range(NI):
        def mm(t, mt):
            A.wait(lg={("w", i, t)})
            d = vr(acc(t, mt), 16)
            A("v_mfma_f32_32x32x16_bf16 %s, %s, %s, %s" % (d, vr(wf(i) + 4 * t, 4), vr(hreg(i, mt), 4), "0" if i == 0 else d))
        A.wait(vm={("h", i)})
        mm(0, 0); mm(0, 1); mm(1, 0)
        if i + 1 < NI:
            A.wait(vm={("w", i + 1)})
            tr_reads((i + 1) % NSLOT, wf(i + 1), ("w", i + 1))
        mm(1, 1)
        if i + DEP < NI: ffn_loads(i + DEP)
    if opt.stamps: clk_end(A, opt, 7, NST2, ST2_OFF); stamp(A, opt, 2, NST2, ST2_OFF)
    write_partial(True)
    A("s_branch K2_RED")

    A.label("K2_ATT")
    A.vm = []; A.lg = []
    if opt.k2prio: A("s_setprio %d" % opt.k2prio)
    srd(A, 24, 4, 512 * 512 * 2)
    if opt.k2rot:
        A("s_lshl1_add_u32 s56, s54, s55")
    else:
        A("s_mov_b32 s56, 0")
    for h in range(8):
        A("s_add_u32 s57, s56, %d" % h)
        A("s_and_b32 s57, s57, 7")
        A("s_lshl_b32 s%d, s57, 10" % (70 + h))
    A("s_lshl_b32 s52, s20, 16")
    A("s_lshl_b32 s53, s22, 13")
    A("s_add_u32 s52, s52, s53")
    A("s_add_u32 s52, s52, 0x%x" % Q_OFF)
    A("v_add_u32 v3, s52, v9")
    A("v_add_u32 v4, 0x8000, v3")
    A("v_min_u32 v5, 16, v14")
    A("v_lshlrev_b32 v5, 6, v5")
    A("v_lshl_add_u32 v5, v15, 5, v5")
    A("s_lshl_b32 s52, s22, 14")
    A("s_add_u32 s52, s52, 0x%x" % KVT_OFF)
    A("v_add_u32 v5, s52, v5")
    A("s_lshl_b32 s64, s22, 17")
    A("s_mul_i32 s62, s22, %d" % AREG)
    A("s_add_u32 s62, s62, %d" % (4 * FRING))
    QR = 64; KVR = 128; OD = 32
    def qr(h, mt): return QR + 8 * h + 4 * mt
    def head_loads(h):
        A.vmem("buffer_load_dwordx4 %s, v3, s[40:43], s%d offen" % (vr(qr(h, 0), 4), 70 + h), ("q", h, 0))
        A.vmem("buffer_load_dwordx4 %s, v4, s[40:43], s%d offen" % (vr(qr(h, 1), 4), 70 + h), ("q", h, 1))
        A("s_lshl_b32 s52, s%d, 1" % (70 + h))
        A.vmem("buffer_load_dwordx4 %s, v5, s[40:43], s52 offen" % vr(KVR + 8 * h, 4), ("kv", h))
        A.vmem("buffer_load_dwordx4 %s, v5, s[40:43], s52 offen offset:16" % vr(KVR + 8 * h + 4, 4), ("kv", h))
    def wo_loads(h):
        A("s_add_u32 m0, s62, %d" % (h * 2048))
        A("s_lshl4_add_u32 s52, s%d, s64" % (70 + h))
        A.vmem("buffer_load_dwordx4 v6, s[24:27], s52 offen lds", ("w", h))
        A.vmem("buffer_load_dwordx4 v7, s[24:27], s52 offen offset:1024 lds", ("w", h))
    HA = opt.k2ha
    for h in range(HA):
        head_loads(h)
        if h == 0:
            A.vmem("buffer_load_dwordx2 v[10:11], v8, s[40:43], s65 offen", "g")
            A.vmem("buffer_load_dwordx2 v[12:13], v8, s[40:43], s65 offen offset:256", "g")
        if h >= 1: wo_loads(h - 1)
    lds_addrs()
    A("s_mov_b32 s54, 0x%x" % LOG2E)
    A("s_mov_b32 s56, 0x358637bd")
    A("s_mov_b32 s57, 0xffff0000")
    V = A
    def P(h):
        for mt in range(2):
            A.wait(vm={("q", h, mt)})
            q = qr(h, mt)
            for j in range(0, 4, 2):
                for jj in range(2):
                    t = 24 + 2 * jj
                    V("v_lshlrev_b32 v%d, 16, v%d" % (t, q + j + jj))
                    V("v_and_b32 v%d, s57, v%d" % (t + 1, q + j + jj))
                for x in range(4):
                    V("v_mul_f32 v%d, s54, v%d" % (28 + x, 24 + x))
                for x in range(4):
                    V("v_exp_f32_e64 v%d, v%d clamp" % (28 + x, 28 + x))
                    V("v_max_f32 v%d, s56, v%d" % (24 + x, 24 + x))
                for x in range(4):
                    V("v_add_f32 v%d, v%d, v%d" % (24 + x, 24 + x, 28 + x))
                for jj in range(2):
                    t = 24 + 2 * jj
                    V("v_cvt_pk_bf16_f32 v%d, v%d, v%d" % (q + j + jj, t, t + 1))
        A.wait(vm={("kv", h)})
        for j in range(4):
            V("v_cvt_pk_bf16_f32 v%d, v%d, v%d" % (KVR + 8 * h + j, KVR + 8 * h + 2 * j, KVR + 8 * h + 2 * j + 1))
    def M(h):
        for mt in range(2):
            A("v_mfma_f32_32x32x16_bf16 %s, %s, %s, 0" % (vr(OD + 16 * mt, 16), vr(KVR + 8 * h, 4), vr(qr(h, mt), 4)))
    def N(h):
        A.wait(vm={"g"})
        V("v_add_f32 v1, s56, v%d" % (OD + 8))
        V("v_add_f32 v2, s56, v%d" % (OD + 24))
        V("v_rcp_f32 v1, v1")
        V("v_rcp_f32 v2, v2")
        V("v_mul_f32 v1, v1, v10")
        V("v_mul_f32 v2, v2, v12")
        for mt in range(2):
            d = OD + 16 * mt
            for j in range(8):
                V("v_mul_f32 v%d, v%d, v%d" % (d + j, d + j, 1 + mt))
            for j in range(4):
                V("v_cvt_pk_bf16_f32 v%d, v%d, v%d" % (qr(h, mt) + j, d + 2 * j, d + 2 * j + 1))
    def R(h):
        A.wait(vm={("w", h)})
        tr_reads(h, 16, ("w", h))
    def W(h):
        for t in range(2):
            for mt in range(2):
                A.wait(lg={("w", h, t)})
                d = vr(acc(t, mt), 16)
                A("v_mfma_f32_32x32x16_bf16 %s, %s, %s, %s" % (d, vr(16 + 4 * t, 4), vr(qr(h, mt), 4), "0" if h == 0 else d))
    def L(h):
        if h + HA < 8: head_loads(h + HA)
        if h + HA - 1 < 8: wo_loads(h + HA - 1)
    P(0)
    if opt.stamps: stamp(A, opt, 3, NST2, ST2_OFF)
    M(0); L(0)
    for h in range(1, 8):
        P(h); R(h - 1); N(h - 1); M(h); W(h - 1); L(h)
    R(7); N(7); W(7)
    if opt.stamps: stamp(A, opt, 4, NST2, ST2_OFF)
    write_partial(False)

    A.label("K2_RED")
    A.vm = []
    A("v_lshrrev_b32 v16, 3, v0")
    A("s_lshl_b32 s52, s23, 3")
    A("v_add_u32 v16, s52, v16")
    A("v_and_b32 v17, 7, v0")
    A("v_mul_u32_u24 v4, 272, v16")
    A("v_lshl_add_u32 v4, v17, 5, v4")
    A("v_add_u32 v5, %d, v4" % (2 * FRING))
    A("v_add_u32 v6, %d, v4" % (4 * FRING))
    A("v_lshlrev_b32 v17, 4, v17")
    A("v_lshl_add_u32 v0, v16, 10, v17")
    A("s_lshl_b32 s66, s20, 16")
    A("s_lshl_b32 s52, s21, 7")
    A("s_add_u32 s66, s66, s52")
    A("s_waitcnt lgkmcnt(0)")
    A.lg = []
    A("s_barrier")
    R0 = 64
    plist = [(6, 0), (6, AREG), (6, 2 * AREG), (6, 3 * AREG), (4, 0), (4, FRING), (5, 0), (5, FRING)]
    for p, (areg, off) in enumerate(plist):
        for c in range(2):
            A.lds("ds_read_b128 %s, v%d offset:%d" % (vr(R0 + p * 8 + c * 4, 4), areg, off + c * 16), ("r", p))
    for p in range(1, 8):
        A.wait(lg={("r", p)})
        for j in range(4):
            A("v_pk_add_f32 %s, %s, %s" % (vr(R0 + 2 * j, 2), vr(R0 + 2 * j, 2), vr(R0 + p * 8 + 2 * j, 2)))
    for j in range(4):
        A("v_cvt_pk_bf16_f32 v%d, v%d, v%d" % (R0 + 8 + j, R0 + 2 * j, R0 + 2 * j + 1))
    A.vmem("buffer_store_dwordx4 %s, v0, s[32:35], s66 offen" % vr(R0 + 8, 4))
    if opt.stamps:
        A.wait(vm='all')
        stamp(A, opt, 5, NST2, ST2_OFF)
        if opt.dbgout:
            A("s_waitcnt vmcnt(0)")
            A("s_barrier")
            A("s_load_dwordx2 s[16:17], s[0:1], 72")
            A("s_waitcnt lgkmcnt(0)")
            srd(A, 44, 16, 256)
            A("v_mbcnt_lo_u32_b32 v1, -1, 0")
            A("v_mbcnt_hi_u32_b32 v1, -1, v1")
            A("v_and_b32 v1, 7, v1")
            A("v_lshlrev_b32 v2, 3, v1")
            A("s_mul_i32 s52, s2, %d" % (NST1 * 8))
            A("s_add_u32 s52, s52, 0x%x" % ST_OFF)
            A("s_mul_i32 s53, s2, %d" % (NST2 * 8))
            A("s_add_u32 s53, s53, 0x%x" % ST2_OFF)
            A("s_mov_b32 s54, 0x%x" % ST_OFF)
            A("buffer_load_dword v3, v2, s[40:43], s52 offen sc0 sc1")
            A("buffer_load_dword v4, v2, s[40:43], s53 offen sc0 sc1")
            A("buffer_load_dword v5, off, s[40:43], s54 sc0 sc1")
            A("s_waitcnt vmcnt(0)")
            A("v_sub_u32 v3, v3, v5")
            A("v_sub_u32 v4, v4, v5")
            A("v_add_u32 v3, 100, v3")
            A("v_add_u32 v4, 100, v4")
            A("v_lshlrev_b32 v2, 2, v1")
            A("buffer_atomic_umax v3, v2, s[44:47], 0 offen")
            A("buffer_atomic_umax v4, v2, s[44:47], 0 offen offset:32")
    A.label("K2_END")
    A("s_endpgm")
    A.lines = hz.fix(A.lines, True)
    return A.text()
```

```python
import sys, argparse

NAME = "gated_mix__linear_attn_block__glu_gated_bilinear__prompt"

H_OFF   = 0x0
Q_OFF   = 0x700000
KVT_OFF = 0x900000
G_OFF   = 0x910000
ST_OFF  = 0x1000000
WS_SIZE = 0x2000000

LOG2E = 0x3fb8aa3b

class Asm:
    def __init__(self):
        self.lines = []
        self.vm = []
        self.lg = []
    def __call__(self, s):
        self.lines.append("    " + s)
    def label(self, s):
        self.lines.append(s + ":")
    def comment(self, s):
        self.lines.append("    ; " + s)
    def raw(self, s):
        self.lines.append(s)
    def vmem(self, s, tag=None):
        if len(self.vm) >= 63:
            self("s_waitcnt vmcnt(62)")
            self.vm = self.vm[-62:]
        self(s); self.vm.append(tag)
    def lds(self, s, tag=None):
        if len(self.lg) >= 15:
            self("s_waitcnt lgkmcnt(14)")
            self.lg = self.lg[-14:]
        self(s); self.lg.append(tag)
    def _need(self, q, tags):
        idx = -1
        for i, t in enumerate(q):
            if t in tags: idx = i
        if idx < 0: return None
        return len(q) - 1 - idx
    def wait(self, vm=None, lg=None):
        parts = []
        if vm is not None:
            n = 0 if vm == 'all' else self._need(self.vm, vm)
            if n is not None and (len(self.vm) > n):
                assert n <= 63
                parts.append("vmcnt(%d)" % n)
                self.vm = self.vm[len(self.vm) - n:] if n else []
        if lg is not None:
            n = 0 if lg == 'all' else self._need(self.lg, lg)
            if n is not None and (len(self.lg) > n):
                assert n <= 15, n
                parts.append("lgkmcnt(%d)" % n)
                self.lg = self.lg[len(self.lg) - n:] if n else []
        if parts:
            self("s_waitcnt " + " ".join(parts))
    def text(self):
        return "\n".join(self.lines) + "\n"

def vr(a, n): return "v[%d:%d]" % (a, a + n - 1) if n > 1 else "v%d" % a
def ar(a, n): return "a[%d:%d]" % (a, a + n - 1) if n > 1 else "a%d" % a
def sr(a, n): return "s[%d:%d]" % (a, a + n - 1) if n > 1 else "s%d" % a

def srd(A, d, lo, size):
    A("s_mov_b32 s%d, s%d" % (d, lo))
    A("s_and_b32 s%d, s%d, 0xffff" % (d + 1, lo + 1))
    A("s_mov_b32 s%d, 0x%x" % (d + 2, size))
    A("s_mov_b32 s%d, 0x20000" % (d + 3))

def stamp(A, opt, idx, nst, base, wgreg="s2", cond_wave=None):
    if not opt.stamps: return
    A("s_memrealtime s[90:91]")
    A("s_waitcnt lgkmcnt(0)")
    A.lg = []
    A("v_mov_b32 v254, s90") if False else None
    A("s_mul_i32 s92, %s, %d" % (wgreg, nst * 8))
    A("s_add_u32 s92, s92, 0x%x" % (base + idx * 8))
    A("v_mov_b32 v%d, s90" % opt.stv)
    A("v_mov_b32 v%d, s91" % (opt.stv + 1))
    A.vmem("buffer_store_dwordx2 v[%d:%d], off, s[40:43], s92" % (opt.stv, opt.stv + 1), "stamp")

def clk_begin(A, opt):
    if not opt.stamps: return
    A("s_mov_b64 s[88:89], s[90:91]")
    A("s_memtime s[94:95]")
    A("s_waitcnt lgkmcnt(0)")
def clk_end(A, opt, idx, nst, base):
    if not opt.stamps: return
    A("s_memtime s[86:87]")
    A("s_waitcnt lgkmcnt(0)")
    A.lg = []
    A("s_sub_u32 s86, s86, s94")
    A("s_add_u32 s88, s88, s86")
    A("s_addc_u32 s89, s89, 0")
    A("s_mul_i32 s92, s2, %d" % (nst * 8))
    A("s_add_u32 s92, s92, 0x%x" % (base + idx * 8))
    A("v_mov_b32 v%d, s88" % (opt.stv - 2))
    A("v_mov_b32 v%d, s89" % (opt.stv - 1))
    A.vmem("buffer_store_dwordx2 v[%d:%d], off, s[40:43], s92" % (opt.stv - 2, opt.stv - 1), "stamp")

XB = 0
WB = 98304
K1_LDS = WB + 3 * 20480
NST1 = 16

def k1(opt):
    A = Asm()
    A.raw(".globl k1_kernel\n.p2align 8\n.type k1_kernel,@function\nk1_kernel:")
    A("s_cmp_ge_u32 s2, 256")
    A("s_cbranch_scc1 K1_END")
    A("s_load_dwordx4 s[4:7], s[0:1], 0")
    A("s_load_dwordx4 s[8:11], s[0:1], 32")
    A("s_load_dwordx2 s[12:13], s[0:1], 56")
    A("s_load_dwordx4 s[16:19], s[0:1], 72")
    A("s_and_b32 s20, s2, 7")
    A("s_lshr_b32 s21, s2, 3")
    if opt.k1map == 0:
        A("s_and_b32 s52, s20, 1")
        A("s_lshl_b32 s52, s52, 2")
        A("s_and_b32 s53, s21, 3")
        A("s_lshr_b32 s54, s20, 1")
        A("s_lshl_b32 s54, s54, 3")
        A("s_lshr_b32 s55, s21, 2")
        A("s_add_u32 s20, s52, s53")
        A("s_add_u32 s21, s54, s55")
    else:
        pass
    A("v_lshrrev_b32 v1, 6, v0")
    A("v_and_b32 v0, 63, v0")
    A("s_nop 0")
    A("v_readfirstlane_b32 s22, v1")
    A("s_waitcnt lgkmcnt(0)")
    srd(A, 24, 4, 2048 * 512 * 2)
    srd(A, 36, 6, 512 * 1536 * 2)
    srd(A, 40, 18, WS_SIZE)
    srd(A, 44, 16, 256)
    srd(A, 48, 12, 1024)
    A("s_cmp_lt_u32 s21, 28")
    A("s_cselect_b32 s28, s8, s6")
    A("s_cselect_b32 s29, s9, s7")
    A("s_cselect_b32 s32, s10, s6")
    A("s_cselect_b32 s33, s11, s7")
    A("s_cselect_b32 s30, 0x%x, 0x%x" % (512 * 1792 * 2, 512 * 1536 * 2)) if False else None
    A("s_mov_b32 s56, 0x%x" % (512 * 1792 * 2))
    A("s_mov_b32 s57, 0x%x" % (512 * 1536 * 2))
    A("s_cselect_b32 s30, s56, s57")
    A("s_cselect_b32 s34, s56, s57")
    A("s_movk_i32 s56, 3584")
    A("s_movk_i32 s57, 3072")
    A("s_cselect_b32 s58, s56, s57")
    A("s_and_b32 s29, s29, 0xffff")
    A("s_and_b32 s33, s33, 0xffff")
    A("s_mov_b32 s31, 0x20000")
    A("s_mov_b32 s35, 0x20000")
    A("s_cmp_ge_u32 s22, 4")
    A("s_cbranch_scc1 K1_LOADER")

    opt.stv = 72
    stamp(A, opt, 0, NST1, ST_OFF) if False else None
    A("v_and_b32 v8, 31, v0")
    A("v_lshrrev_b32 v9, 5, v0")
    A("v_bfe_u32 v10, v0, 1, 3")
    A("v_xor_b32 v10, v10, v9")
    A("v_lshlrev_b32 v10, 4, v10")
    A("v_lshl_add_u32 v10, v8, 7, v10")
    A("s_mul_i32 s52, s22, 24576")
    A("v_add_u32 v1, s52, v10")
    A("v_xor_b32 v2, 32, v1")
    A("v_xor_b32 v3, 64, v1")
    A("v_xor_b32 v4, 96, v1")
    A("v_bfe_u32 v10, v0, 2, 2")
    A("v_and_b32 v11, 3, v0")
    A("v_bfe_u32 v12, v0, 4, 1")
    A("v_lshrrev_b32 v13, 1, v11")
    A("v_lshl_add_u32 v13, v12, 1, v13")
    A("v_bfe_u32 v14, v0, 3, 1")
    A("v_lshlrev_b32 v14, 2, v14")
    A("v_xor_b32 v13, v13, v14")
    A("v_lshlrev_b32 v13, 4, v13")
    A("v_and_b32 v14, 1, v11")
    A("v_lshl_add_u32 v13, v14, 3, v13")
    A("v_lshl_add_u32 v13, v10, 7, v13")
    A("v_lshl_add_u32 v13, v9, 10, v13")
    A("v_add_u32 v5, 0x%x, v13" % WB)
    A("v_xor_b32 v6, 64, v5")
    A("v_lshlrev_b32 v13, 3, v11")
    A("v_lshl_add_u32 v13, v12, 5, v13")
    A("v_lshl_add_u32 v13, v10, 6, v13")
    A("v_lshl_add_u32 v13, v9, 9, v13")
    A("v_add_u32 v7, 0x%x, v13" % (WB + 16384))

    ACC = 96
    def acc(mt, t): return ACC + (mt * 5 + t) * 16
    FR = [16, 44]
    def xf(st, mt): return FR[st] + mt * 4
    def wf(st, t): return FR[st] + 8 + t * 4

    def reads_for(n):
        s, ks = divmod(n, 4); slot = s % 3; st = n % 2
        out = []
        def xr(mt):
            out.append(("ds_read_b128 %s, v%d offset:%d" % (vr(xf(st, mt), 4), 1 + ks, slot * 8192 + mt * 4096), ("x", n, mt)))
        def wr(t):
            for rd in range(2):
                if t < 4:
                    off = slot * 20480 + ks * 2048 + rd * 512 + (8192 if t >= 2 else 0)
                    a = 5 + (t & 1)
                else:
                    off = slot * 20480 + ks * 1024 + rd * 256
                    a = 7
                out.append(("ds_read_b64_tr_b16 %s, v%d offset:%d" % (vr(wf(st, t) + 2 * rd, 2), a, off), ("w", n, t)))
        xr(0); wr(0); xr(1); wr(1); wr(2); wr(3); wr(4)
        return out

    def mfma(n, mt, t):
        st = n % 2
        c = "0" if n == 0 else vr(acc(mt, t), 16)
        if t < 4:
            return "v_mfma_f32_32x32x16_bf16 %s, %s, %s, %s" % (vr(acc(mt, t), 16), vr(wf(st, t), 4), vr(xf(st, mt), 4), c)
        return "v_mfma_f32_32x32x16_bf16 %s, %s, %s, %s" % (vr(acc(mt, t), 16), vr(xf(st, mt), 4), vr(wf(st, t), 4), c)

    if opt.stamps:
        stamp(A, opt, 0, NST1, ST_OFF)
    A("s_barrier")
    if opt.stamps:
        stamp(A, opt, 1, NST1, ST_OFF)
        A("s_mov_b64 s[88:89], s[90:91]")
        A("s_memtime s[94:95]")
        A("s_waitcnt lgkmcnt(0)")
    for (s_, tg) in reads_for(0):
        A.lds(s_, tg)
    NK = 32
    for n in range(NK):
        s, ks = divmod(n, 4)
        nxt = reads_for(n + 1) if n + 1 < NK else []
        order = [(mt, t) for t in range(5) for mt in range(2)]
        need_bar = (ks == 3 and n + 1 < NK)
        A.comment("kstep %d" % n)
        for i, (mt, t) in enumerate(order):
            if need_bar and i == 0:
                A.wait(lg='all')
            else:
                A.wait(lg={("x", n, mt), ("w", n, t)})
            if opt.mf16:
                st_ = n % 2
                for hh in range(2):
                    d = vr(acc(mt, t) + st_ * 8 + hh * 4, 4)
                    A("v_mfma_f32_16x16x32_bf16 %s, %s, %s, %s" % (d, vr(wf(st_, t), 4), vr(xf(st_, mt), 4), "0" if n < 2 else d))
            elif not opt.nomfma:
                A(mfma(n, mt, t))
            if need_bar and i == 0:
                A("s_barrier")
            k = 0
            while nxt and k < 2:
                s_, tg = nxt.pop(0)
                A.lds(s_, tg); k += 1
    if opt.stamps:
        stamp(A, opt, 2, NST1, ST_OFF)
        A("s_memtime s[86:87]")
        A("s_waitcnt lgkmcnt(0)")
        A("s_sub_u32 s86, s86, s94")
        A("s_add_u32 s88, s88, s86")
        A("s_addc_u32 s89, s89, 0")
        A("s_add_u32 s92, s92, 40")
        A("v_mov_b32 v74, s88")
        A("v_mov_b32 v75, s89")
        A.vmem("buffer_store_dwordx2 v[74:75], off, s[40:43], s92", "stamp")
    A("s_nop 7"); A("s_nop 3")
    A("v_and_b32 v8, 16, v0")
    A("v_cmp_eq_u32 vcc, 0, v8")
    A("s_mov_b32 s52, 0x%x" % LOG2E)
    A("s_mov_b32 s53, 0x358637bd")
    A("v_mov_b32 v9, 0x3f803f80")
    for mt in range(2):
        a = acc(mt, 4)
        for r in range(0, 16, 2):
            t0, t1 = 72 + (r % 8), 73 + (r % 8)
            A("v_mul_f32 v%d, s52, v%d" % (t0, a + r))
            A("v_mul_f32 v%d, s52, v%d" % (t1, a + r + 1))
            A("v_exp_f32_e64 v%d, v%d clamp" % (t0, t0))
            A("v_exp_f32_e64 v%d, v%d clamp" % (t1, t1))
            A("v_max_f32 v80, 0, v%d" % (a + r))
            A("v_max_f32 v81, 0, v%d" % (a + r + 1))
            A("v_add_f32 v%d, v%d, v80" % (t0, t0))
            A("v_add_f32 v%d, v%d, v81" % (t1, t1))
            A("v_add_f32 v%d, s53, v%d" % (t0, t0))
            A("v_add_f32 v%d, s53, v%d" % (t1, t1))
            A("v_cndmask_b32 v%d, v%d, v%d, vcc" % (t0, a + r, t0))
            A("v_cndmask_b32 v%d, v%d, v%d, vcc" % (t1, a + r + 1, t1))
            p = 16 + mt * 8 + r // 2
            A("v_cvt_pk_bf16_f32 v%d, v%d, v%d" % (p, t0, t1))
            A("v_cndmask_b32 v%d, v%d, v9, vcc" % (p + 16, p))
    A("s_nop 1")
    KD = 48
    for i in range(4):
        c = "0" if i == 0 else vr(KD, 16)
        A("v_mfma_f32_32x32x16_bf16 %s, %s, %s, %s" % (vr(KD, 16), vr(32 + 4 * i, 4), vr(16 + 4 * i, 4), c))
    PB = WB + 2 * 20480
    A("v_and_b32 v8, 31, v0")
    A("v_lshrrev_b32 v10, 5, v0")
    A("v_lshlrev_b32 v8, 2, v8")
    A("v_lshl_add_u32 v8, v10, 9, v8")
    A("s_lshl_b32 s54, s22, 12")
    A("s_add_u32 s54, s54, 0x%x" % PB)
    A("v_add_u32 v8, s54, v8")
    A("s_nop 7")
    for r in range(8, 16):
        e = 8 * ((r - 8) // 4) + (r % 4)
        A.lds("ds_write_b32 v8, v%d offset:%d" % (KD + r, e * 128))
    A.lds("ds_write_b32 v8, v%d offset:%d" % (KD, 16 * 128))
    A.wait(lg='all')
    A("s_barrier")
    A("v_lshlrev_b32 v8, 4, v0")
    A("s_lshl_b32 s54, s20, 3")
    A("s_lshl_b32 s55, s22, 1")
    A("s_add_u32 s54, s54, s55")
    A("s_cmp_ge_u32 s21, 28")
    A("s_cbranch_scc1 K1_QEPI")
    A("s_mul_i32 s55, s54, 114688")
    A("s_lshl_b32 s56, s21, 12")
    A("s_add_u32 s55, s55, s56")
    A("s_add_u32 s56, s55, 114688")
    pbase = 16
    for mt in range(2):
        for tp in range(2):
            g, u = acc(mt, tp), acc(mt, 2 + tp)
            for i in range(8):
                A("v_pk_mul_f32 %s, %s, %s" % (vr(g + 2 * i, 2), vr(g + 2 * i, 2), vr(u + 2 * i, 2)))
            p = pbase + (mt * 2 + tp) * 8
            for i in range(8):
                A("v_cvt_pk_bf16_f32 v%d, v%d, v%d" % (p + i, g + 2 * i, g + 2 * i + 1))
            for half in range(2):
                A.vmem("buffer_store_dwordx4 %s, v8, s[40:43], s%d offen offset:%d" % (vr(p + 4 * half, 4), 55 + mt, (2 * tp + half) * 1024))
    if opt.stamps:
        A.wait(vm='all')
        stamp(A, opt, 3, NST1, ST_OFF)
    A("s_endpgm")
    A.label("K1_QEPI")
    A.vm = []
    A("s_lshl_b32 s55, s54, 15")
    A("s_sub_u32 s56, s21, 28")
    A("s_lshl_b32 s56, s56, 13")
    A("s_add_u32 s55, s55, s56")
    A("s_add_u32 s55, s55, 0x%x" % Q_OFF)
    A("s_add_u32 s56, s55, 4096")
    A("s_add_u32 s57, s55, 32768")
    A("s_add_u32 s58, s57, 4096")
    for mt in range(2):
        for t in range(4):
            g = acc(mt, t)
            p = 16 + ((mt * 4 + t) % 8) * 8
            for i in range(8):
                A("v_cvt_pk_bf16_f32 v%d, v%d, v%d" % (p + i, g + 2 * i, g + 2 * i + 1))
            for half in range(2):
                A.vmem("buffer_store_dwordx4 %s, v8, s[40:43], s%d offen offset:%d" % (vr(p + 4 * half, 4), 55 + mt * 2 + (t >> 1), ((2 * t + half) % 4) * 1024))
    if opt.stamps:
        A.wait(vm='all')
        stamp(A, opt, 3, NST1, ST_OFF)
    A("s_endpgm")

    A.label("K1_LOADER")
    A.vm = []; A.lg = []
    opt.stv = 40
    A("s_sub_u32 s22, s22, 4")
    A("v_lshrrev_b32 v2, 3, v0")
    A("v_and_b32 v3, 7, v0")
    A("v_lshrrev_b32 v4, 4, v0")
    A("v_xor_b32 v5, v3, v4")
    A("v_lshlrev_b32 v5, 4, v5")
    A("v_lshl_add_u32 v10, v2, 10, v5")
    A("v_xor_b32 v11, 64, v10")
    A("v_and_b32 v6, 1, v4")
    A("v_lshlrev_b32 v6, 2, v6")
    A("v_xor_b32 v6, v3, v6")
    A("v_lshlrev_b32 v6, 4, v6")
    A("v_mad_u32_u24 v12, v2, s58, v6")
    A("v_lshrrev_b32 v2, 2, v0")
    A("v_bfe_u32 v3, v0, 1, 1")
    A("v_and_b32 v4, 1, v0")
    A("v_lshlrev_b32 v4, 4, v4")
    A("v_lshl_add_u32 v4, v3, 10, v4")
    A("v_add_u32 v4, 1024, v4")
    A("s_movk_i32 s52, 3072")
    A("v_mad_u32_u24 v13, v2, s52, v4")
    A("s_lshl_b32 s60, s20, 18")
    A("s_lshl_b32 s52, s22, 16")
    A("s_add_u32 s60, s60, s52")
    A("s_lshl_b32 s52, s21, 7")
    A("s_sub_u32 s53, s21, 28")
    A("s_lshl_b32 s53, s53, 8")
    A("s_add_u32 s54, s53, 128")
    A("s_cmp_lt_u32 s21, 28")
    A("s_cselect_b32 s61, s52, s53")
    A("s_cselect_b32 s62, s52, s54")
    A("s_lshl_b32 s52, s22, 4")
    A("s_mul_i32 s53, s52, s58")
    A("s_add_u32 s61, s61, s53")
    A("s_add_u32 s62, s62, s53")
    A("s_mul_i32 s63, s52, 3072")
    A("s_lshl_b32 s53, s21, 5")
    A("s_add_u32 s63, s63, s53")
    A("s_lshl_b32 s64, s58, 3")
    A("s_lshl_b32 s65, s58, 6")
    A("s_mul_i32 s66, s22, 24576")
    A("s_lshl_b32 s67, s22, 11")
    A("s_add_u32 s67, s67, 0x%x" % WB)
    A("s_lshl_b32 s68, s22, 10")
    A("s_add_u32 s68, s68, 0x%x" % (WB + 16384))

    if opt.k1rot:
        A("s_and_b32 s52, s21, 7")
        A("s_and_b32 s53, s20, 3")
        A("s_lshl1_add_u32 s72, s53, s52")
        A("s_and_b32 s72, s72, 7")
    else:
        A("s_mov_b32 s72, 0")

    def issue_stage(s):
        slot = s % 3
        tag = ("st", s)
        A("s_mul_i32 s74, s72, s65")
        A("s_lshl_b32 s73, s72, 7")
        A("s_add_u32 s73, s73, s60")
        A("s_mul_i32 s75, s72, %d" % (64 * 3072))
        A("s_add_u32 s75, s75, s63")
        A("s_add_u32 s72, s72, 1")
        A("s_and_b32 s72, s72, 7")
        def xload(a):
            A("s_add_u32 m0, s66, %d" % (slot * 8192 + a * 1024))
            A("s_add_u32 s52, s73, %d" % (a * 8192))
            A.vmem("buffer_load_dwordx4 v%d, s[24:27], s52 offen lds" % (10 + (a & 1)), tag)
        for (sreg, srdn, ldsoff) in ((61, 28, 0), (62, 32, 8192)):
            A("s_add_u32 m0, s67, %d" % (slot * 20480 + ldsoff))
            A("s_add_u32 s52, s%d, s74" % sreg)
            A.vmem("buffer_load_dwordx4 v12, s[%d:%d], s52 offen lds" % (srdn, srdn + 3), tag)
            A("s_add_u32 m0, s67, %d" % (slot * 20480 + ldsoff + 1024))
            A("s_add_u32 s52, s52, s64")
            A.vmem("buffer_load_dwordx4 v12, s[%d:%d], s52 offen lds" % (srdn, srdn + 3), tag)
        A("s_add_u32 m0, s68, %d" % (slot * 20480))
        A("s_nop 0")
        A.vmem("buffer_load_dwordx4 v13, s[36:39], s75 offen lds", tag)
        for a in range(8):
            xload(a)

    if opt.stamps:
        stamp(A, opt, 4, NST1, ST_OFF)
    issue_stage(0)
    A("v_lshlrev_b32 v14, 4, v0")
    A("s_lshl_b32 s70, s21, 11")
    A("s_add_u32 s70, s70, 0x%x" % KVT_OFF)
    A("s_or_b32 s71, s20, s22")
    A("v_mov_b32 v32, 0"); A("v_mov_b32 v33, 0"); A("v_mov_b32 v34, 0"); A("v_mov_b32 v35, 0")
    A("s_cmp_lg_u32 s71, 0")
    A("s_cbranch_scc1 K1_NOZERO")
    A("buffer_store_dwordx4 v[32:35], v14, s[40:43], s70 offen sc0 sc1")
    A("buffer_store_dwordx4 v[32:35], v14, s[40:43], s70 offen offset:1024 sc0 sc1")
    A("s_nop 1")
    A.label("K1_NOZERO")
    issue_stage(1)
    if opt.stamps:
        stamp(A, opt, 5, NST1, ST_OFF)

    def gate_loads():
        A("v_lshrrev_b32 v2, 5, v0")
        A("v_and_b32 v3, 31, v0")
        A("v_lshlrev_b32 v3, 5, v3")
        A("v_lshl_add_u32 v4, v2, 10, v3")
        A("s_lshl_b32 s69, s20, 8")
        A("s_lshl_b32 s52, s21, 3")
        A("s_add_u32 s69, s69, s52")
        A("s_lshl_b32 s52, s22, 1")
        A("s_add_u32 s69, s69, s52")
        A("s_lshl_b32 s52, s69, 10")
        A.vmem("buffer_load_dwordx4 v[16:19], v4, s[24:27], s52 offen", "g")
        A.vmem("buffer_load_dwordx4 v[20:23], v4, s[24:27], s52 offen offset:16", "g")
        A.vmem("buffer_load_dwordx4 v[24:27], v3, s[48:51], 0 offen", "g")
        A.vmem("buffer_load_dwordx4 v[28:31], v3, s[48:51], 0 offen offset:16", "g")

    def gate_compute():
        A.wait(vm={"g"})
        accv = 38
        first = True
        for i in range(8):
            xr_, wr_ = 16 + i, 24 + i
            A("v_lshlrev_b32 v32, 16, v%d" % xr_)
            A("v_and_b32 v33, 0xffff0000, v%d" % xr_)
            A("v_lshlrev_b32 v34, 16, v%d" % wr_)
            A("v_and_b32 v35, 0xffff0000, v%d" % wr_)
            A("v_mul_f32 v32, v32, v34")
            A("v_mul_f32 v33, v33, v35")
            A("v_cvt_pk_bf16_f32 v32, v32, v33")
            A("v_and_b32 v33, 0xffff0000, v32")
            A("v_lshlrev_b32 v32, 16, v32")
            if first:
                A("v_add_f32 v%d, v32, v33" % accv); first = False
            else:
                A("v_add_f32 v%d, v%d, v32" % (accv, accv))
                A("v_add_f32 v%d, v%d, v33" % (accv, accv))
        for off in (0x041F, 0x081F, 0x101F, 0x201F, 0x401F):
            A("ds_swizzle_b32 v32, v%d offset:0x%x" % (accv, off))
            A("s_waitcnt lgkmcnt(0)")
            A("v_add_f32 v%d, v%d, v32" % (accv, accv))
        A("v_cvt_pk_bf16_f32 v32, v%d, v%d" % (accv, accv))
        A("v_lshlrev_b32 v32, 16, v32")
        A("v_mul_f32 v32, 0xbfb8aa3b, v32")
        A("v_exp_f32 v32, v32")
        A("s_nop 0")
        A("v_add_f32 v32, 1.0, v32")
        A("v_rcp_f32 v32, v32")
        A("s_nop 0")
        A("v_cvt_pk_bf16_f32 v32, v32, v32")
        A("v_lshlrev_b32 v32, 16, v32")
        A("v_sub_f32 v33, 1.0, v32")
        A("v_cvt_pk_bf16_f32 v33, v33, v33")
        A("v_lshlrev_b32 v33, 16, v33")
        A("v_lshrrev_b32 v2, 5, v0")
        A("v_lshlrev_b32 v2, 3, v2")
        A("s_lshl_b32 s52, s69, 3")
        A("s_add_u32 s52, s52, 0x%x" % G_OFF)
        A.vmem("buffer_store_dwordx2 v[32:33], v2, s[40:43], s52 offen", "gst")

    for s in range(8):
        A.wait(vm={("st", s)})
        if opt.stamps:
            stamp(A, opt, 8 + s, NST1, ST_OFF)
        A("s_barrier")
        if s + 2 <= 7:
            issue_stage(s + 2)
        if s == 1:
            A("s_cmp_lg_u32 s71, 0")
            A("s_cbranch_scc1 K1_NOFLAG")
            A("v_mov_b32 v37, 1")
            A("s_lshl_b32 s52, s21, 2")
            A("buffer_store_dword v37, off, s[44:47], s52 sc0 sc1")
            A.label("K1_NOFLAG")
        if s == 5:
            gate_loads()
        if s == 6:
            A("s_lshl_b32 s52, s21, 2")
            A.vmem("buffer_load_dword v36, off, s[44:47], s52 sc0 sc1", "flag")
        if s == 7:
            gate_compute()
    A("s_lshl_b32 s52, s22, 6")
    A("v_add_u32 v2, s52, v0")
    A("v_lshrrev_b32 v3, 4, v2")
    A("v_and_b32 v4, 3, v2")
    A("v_bfe_u32 v5, v2, 2, 1")
    A("v_bfe_u32 v6, v2, 3, 1")
    A("v_lshl_add_u32 v4, v5, 3, v4")
    A("v_lshl_add_u32 v4, v6, 2, v4")
    A("v_lshlrev_b32 v4, 2, v4")
    A("v_lshl_add_u32 v5, v3, 7, v4")
    A("v_add_u32 v5, 0x%x, v5" % PB)
    A("v_add_u32 v6, 0x%x, v4" % (PB + 16 * 128))
    A("v_lshlrev_b32 v7, 2, v2")
    A.wait(vm='all')
    A.label("K1_POLL")
    A("v_readfirstlane_b32 s52, v36")
    A("s_cmp_lg_u32 s52, 0")
    A("s_cbranch_scc1 K1_POLLED")
    A("s_sleep 1")
    A("s_lshl_b32 s52, s21, 2")
    A("buffer_load_dword v36, off, s[44:47], s52 sc0 sc1")
    A("s_waitcnt vmcnt(0)")
    A("s_branch K1_POLL")
    A.label("K1_POLLED")
    A("s_barrier")
    for w in range(4):
        A("ds_read_b32 v%d, v5 offset:%d" % (16 + w, w * 4096))
    for w in range(4):
        A("ds_read_b32 v%d, v6 offset:%d" % (20 + w, w * 4096))
    A("s_waitcnt lgkmcnt(0)")
    A("v_add_f32 v16, v16, v17"); A("v_add_f32 v18, v18, v19"); A("v_add_f32 v16, v16, v18")
    A("v_add_f32 v20, v20, v21"); A("v_add_f32 v22, v22, v23"); A("v_add_f32 v20, v20, v22")
    A("buffer_atomic_add_f32 v16, v7, s[40:43], s70 offen")
    A("v_cmp_gt_u32 vcc, 16, v2")
    A("s_and_saveexec_b64 s[52:53], vcc")
    A("s_cbranch_execz K1_NOZ")
    A("buffer_atomic_add_f32 v20, v7, s[40:43], s70 offen offset:1024")
    A.label("K1_NOZ")
    A("s_mov_b64 exec, s[52:53]")
    if opt.stamps:
        A("s_waitcnt vmcnt(0)")
        stamp(A, opt, 6, NST1, ST_OFF)
    A.label("K1_END")
    A("s_endpgm")
    return A.text()

def kd(name, vgpr, sgpr, accum):
    return """.p2align 6
.amdhsa_kernel %s
  .amdhsa_next_free_vgpr %d
  .amdhsa_next_free_sgpr %d
  .amdhsa_accum_offset %d
  .amdhsa_group_segment_fixed_size 0
  .amdhsa_kernarg_size 88
  .amdhsa_user_sgpr_count 2
  .amdhsa_user_sgpr_kernarg_segment_ptr 1
  .amdhsa_system_sgpr_workgroup_id_x 1
  .amdhsa_float_denorm_mode_32 3
.end_amdhsa_kernel
""" % (name, vgpr, sgpr, accum)

HEADER = open("cdna_kernels/%s.s.ref" % NAME).read().split("; Override launch")[0]

def main():
    ap = argparse.ArgumentParser()
    ap.add_argument("-o", default="out.s")
    ap.add_argument("--stamps", action="store_true")
    ap.add_argument("--nomfma", action="store_true")
    ap.add_argument("--k1map", type=int, default=0)
    ap.add_argument("--k2map", type=int, default=0)
    ap.add_argument("--only", type=str, default="")
    ap.add_argument("--k2rot", type=int, default=1)
    ap.add_argument("--dbgout", action="store_true")
    ap.add_argument("--k2dep", type=int, default=8)
    ap.add_argument("--k2ha", type=int, default=3)
    ap.add_argument("--k2prio", type=int, default=2)
    ap.add_argument("--mf16", action="store_true")
    ap.add_argument("--k1rot", type=int, default=1)
    ap.add_argument("--k2order", type=int, default=0)
    ap.add_argument("--k2pump", type=int, default=8)
    opt = ap.parse_args()
    out = HEADER
    launches = []
    if opt.only != "k2":
        launches.append("; @launch kernel=k1_kernel grid=(256,1,1) block=(512,1,1) lds=%d" % K1_LDS)
    if opt.only != "k1":
        import gen2
        launches.append("; @launch kernel=k2_kernel grid=(256,1,1) block=(%d,1,1) lds=%d" % (gen2.K2_THREADS, gen2.K2_LDS))
    out += "\n".join(launches) + "\n"
    out += '.amdgcn_target "amdgcn-amd-amdhsa--gfx950"\n.text\n'
    if opt.only != "k2":
        out += k1(opt)
    if opt.only != "k1":
        out += gen2.k2(opt)
    out += '.section .rodata,"a"\n'
    if opt.only != "k2":
        out += kd("k1_kernel", 256, 96, 256)
    if opt.only != "k1":
        out += kd("k2_kernel", gen2.K2_VGPR, 96, 256)
    open(opt.o, "w").write(out)

if __name__ == "__main__":
    main()
```

```python
import sys, argparse

NAME = "gated_mix__linear_attn_block__glu_gated_bilinear__prompt"

H_OFF   = 0x0
Q_OFF   = 0x700000
KVT_OFF = 0x900000
G_OFF   = 0x910000
ST_OFF  = 0x1000000
WS_SIZE = 0x2000000

LOG2E = 0x3fb8aa3b

class Asm:
    def __init__(self):
        self.lines = []
        self.vm = []
        self.lg = []
    def __call__(self, s):
        self.lines.append("    " + s)
    def label(self, s):
        self.lines.append(s + ":")
    def comment(self, s):
        self.lines.append("    ; " + s)
    def raw(self, s):
        self.lines.append(s)
    def vmem(self, s, tag=None):
        if len(self.vm) >= 63:
            self("s_waitcnt vmcnt(62)")
            self.vm = self.vm[-62:]
        self(s); self.vm.append(tag)
    def lds(self, s, tag=None):
        if len(self.lg) >= 15:
            self("s_waitcnt lgkmcnt(14)")
            self.lg = self.lg[-14:]
        self(s); self.lg.append(tag)
    def _need(self, q, tags):
        idx = -1
        for i, t in enumerate(q):
            if t in tags: idx = i
        if idx < 0: return None
        return len(q) - 1 - idx
    def wait(self, vm=None, lg=None):
        parts = []
        if vm is not None:
            n = 0 if vm == 'all' else self._need(self.vm, vm)
            if n is not None and (len(self.vm) > n):
                assert n <= 63
                parts.append("vmcnt(%d)" % n)
                self.vm = self.vm[len(self.vm) - n:] if n else []
        if lg is not None:
            n = 0 if lg == 'all' else self._need(self.lg, lg)
            if n is not None and (len(self.lg) > n):
                assert n <= 15, n
                parts.append("lgkmcnt(%d)" % n)
                self.lg = self.lg[len(self.lg) - n:] if n else []
        if parts:
            self("s_waitcnt " + " ".join(parts))
    def text(self):
        return "\n".join(self.lines) + "\n"

def vr(a, n): return "v[%d:%d]" % (a, a + n - 1) if n > 1 else "v%d" % a
def ar(a, n): return "a[%d:%d]" % (a, a + n - 1) if n > 1 else "a%d" % a
def sr(a, n): return "s[%d:%d]" % (a, a + n - 1) if n > 1 else "s%d" % a

def srd(A, d, lo, size):
    A("s_mov_b32 s%d, s%d" % (d, lo))
    A("s_and_b32 s%d, s%d, 0xffff" % (d + 1, lo + 1))
    A("s_mov_b32 s%d, 0x%x" % (d + 2, size))
    A("s_mov_b32 s%d, 0x20000" % (d + 3))

def stamp(A, opt, idx, nst, base, wgreg="s2", cond_wave=None):
    if not opt.stamps: return
    A("s_memrealtime s[90:91]")
    A("s_waitcnt lgkmcnt(0)")
    A.lg = []
    A("v_mov_b32 v254, s90") if False else None
    A("s_mul_i32 s92, %s, %d" % (wgreg, nst * 8))
    A("s_add_u32 s92, s92, 0x%x" % (base + idx * 8))
    A("v_mov_b32 v%d, s90" % opt.stv)
    A("v_mov_b32 v%d, s91" % (opt.stv + 1))
    A.vmem("buffer_store_dwordx2 v[%d:%d], off, s[40:43], s92" % (opt.stv, opt.stv + 1), "stamp")

def clk_begin(A, opt):
    if not opt.stamps: return
    A("s_mov_b64 s[88:89], s[90:91]")
    A("s_memtime s[94:95]")
    A("s_waitcnt lgkmcnt(0)")
def clk_end(A, opt, idx, nst, base):
    if not opt.stamps: return
    A("s_memtime s[86:87]")
    A("s_waitcnt lgkmcnt(0)")
    A.lg = []
    A("s_sub_u32 s86, s86, s94")
    A("s_add_u32 s88, s88, s86")
    A("s_addc_u32 s89, s89, 0")
    A("s_mul_i32 s92, s2, %d" % (nst * 8))
    A("s_add_u32 s92, s92, 0x%x" % (base + idx * 8))
    A("v_mov_b32 v%d, s88" % (opt.stv - 2))
    A("v_mov_b32 v%d, s89" % (opt.stv - 1))
    A.vmem("buffer_store_dwordx2 v[%d:%d], off, s[40:43], s92" % (opt.stv - 2, opt.stv - 1), "stamp")

XB = 0
WB = 98304
K1_LDS = WB + 3 * 20480
NST1 = 16

def k1(opt):
    A = Asm()
    A.raw(".globl k1_kernel\n.p2align 8\n.type k1_kernel,@function\nk1_kernel:")
    A("s_cmp_ge_u32 s2, 256")
    A("s_cbranch_scc1 K1_END")
    A("s_load_dwordx4 s[4:7], s[0:1], 0")
    A("s_load_dwordx4 s[8:11], s[0:1], 32")
    A("s_load_dwordx2 s[12:13], s[0:1], 56")
    A("s_load_dwordx4 s[16:19], s[0:1], 72")
    A("s_and_b32 s20, s2, 7")
    A("s_lshr_b32 s21, s2, 3")
    if opt.k1map == 0:
        A("s_and_b32 s52, s20, 1")
        A("s_lshl_b32 s52, s52, 2")
        A("s_and_b32 s53, s21, 3")
        A("s_lshr_b32 s54, s20, 1")
        A("s_lshl_b32 s54, s54, 3")
        A("s_lshr_b32 s55, s21, 2")
        A("s_add_u32 s20, s52, s53")
        A("s_add_u32 s21, s54, s55")
    else:
        pass
    A("v_lshrrev_b32 v1, 6, v0")
    A("v_and_b32 v0, 63, v0")
    A("s_nop 0")
    A("v_readfirstlane_b32 s22, v1")
    A("s_waitcnt lgkmcnt(0)")
    srd(A, 24, 4, 2048 * 512 * 2)
    srd(A, 36, 6, 512 * 1536 * 2)
    srd(A, 40, 18, WS_SIZE)
    srd(A, 44, 16, 256)
    srd(A, 48, 12, 1024)
    A("s_cmp_lt_u32 s21, 28")
    A("s_cselect_b32 s28, s8, s6")
    A("s_cselect_b32 s29, s9, s7")
    A("s_cselect_b32 s32, s10, s6")
    A("s_cselect_b32 s33, s11, s7")
    A("s_cselect_b32 s30, 0x%x, 0x%x" % (512 * 1792 * 2, 512 * 1536 * 2)) if False else None
    A("s_mov_b32 s56, 0x%x" % (512 * 1792 * 2))
    A("s_mov_b32 s57, 0x%x" % (512 * 1536 * 2))
    A("s_cselect_b32 s30, s56, s57")
    A("s_cselect_b32 s34, s56, s57")
    A("s_movk_i32 s56, 3584")
    A("s_movk_i32 s57, 3072")
    A("s_cselect_b32 s58, s56, s57")
    A("s_and_b32 s29, s29, 0xffff")
    A("s_and_b32 s33, s33, 0xffff")
    A("s_mov_b32 s31, 0x20000")
    A("s_mov_b32 s35, 0x20000")
    A("s_cmp_ge_u32 s22, 4")
    A("s_cbranch_scc1 K1_LOADER")

    opt.stv = 72
    stamp(A, opt, 0, NST1, ST_OFF) if False else None
    A("v_and_b32 v8, 31, v0")
    A("v_lshrrev_b32 v9, 5, v0")
    A("v_bfe_u32 v10, v0, 1, 3")
    A("v_xor_b32 v10, v10, v9")
    A("v_lshlrev_b32 v10, 4, v10")
    A("v_lshl_add_u32 v10, v8, 7, v10")
    A("s_mul_i32 s52, s22, 24576")
    A("v_add_u32 v1, s52, v10")
    A("v_xor_b32 v2, 32, v1")
    A("v_xor_b32 v3, 64, v1")
    A("v_xor_b32 v4, 96, v1")
    A("v_bfe_u32 v10, v0, 2, 2")
    A("v_and_b32 v11, 3, v0")
    A("v_bfe_u32 v12, v0, 4, 1")
    A("v_lshrrev_b32 v13, 1, v11")
    A("v_lshl_add_u32 v13, v12, 1, v13")
    A("v_bfe_u32 v14, v0, 3, 1")
    A("v_lshlrev_b32 v14, 2, v14")
    A("v_xor_b32 v13, v13, v14")
    A("v_lshlrev_b32 v13, 4, v13")
    A("v_and_b32 v14, 1, v11")
    A("v_lshl_add_u32 v13, v14, 3, v13")
    A("v_lshl_add_u32 v13, v10, 7, v13")
    A("v_lshl_add_u32 v13, v9, 10, v13")
    A("v_add_u32 v5, 0x%x, v13" % WB)
    A("v_xor_b32 v6, 64, v5")
    A("v_lshlrev_b32 v13, 3, v11")
    A("v_lshl_add_u32 v13, v12, 5, v13")
    A("v_lshl_add_u32 v13, v10, 6, v13")
    A("v_lshl_add_u32 v13, v9, 9, v13")
    A("v_add_u32 v7, 0x%x, v13" % (WB + 16384))

    ACC = 96
    def acc(mt, t): return ACC + (mt * 5 + t) * 16
    FR = [16, 44]
    def xf(st, mt): return FR[st] + mt * 4
    def wf(st, t): return FR[st] + 8 + t * 4

    def reads_for(n):
        s, ks = divmod(n, 4); slot = s % 3; st = n % 2
        out = []
        def xr(mt):
            out.append(("ds_read_b128 %s, v%d offset:%d" % (vr(xf(st, mt), 4), 1 + ks, slot * 8192 + mt * 4096), ("x", n, mt)))
        def wr(t):
            for rd in range(2):
                if t < 4:
                    off = slot * 20480 + ks * 2048 + rd * 512 + (8192 if t >= 2 else 0)
                    a = 5 + (t & 1)
                else:
                    off = slot * 20480 + ks * 1024 + rd * 256
                    a = 7
                out.append(("ds_read_b64_tr_b16 %s, v%d offset:%d" % (vr(wf(st, t) + 2 * rd, 2), a, off), ("w", n, t)))
        xr(0); wr(0); xr(1); wr(1); wr(2); wr(3); wr(4)
        return out

    def mfma(n, mt, t):
        st = n % 2
        c = "0" if n == 0 else vr(acc(mt, t), 16)
        if t < 4:
            return "v_mfma_f32_32x32x16_bf16 %s, %s, %s, %s" % (vr(acc(mt, t), 16), vr(wf(st, t), 4), vr(xf(st, mt), 4), c)
        return "v_mfma_f32_32x32x16_bf16 %s, %s, %s, %s" % (vr(acc(mt, t), 16), vr(xf(st, mt), 4), vr(wf(st, t), 4), c)

    if opt.stamps:
        stamp(A, opt, 0, NST1, ST_OFF)
    A("s_barrier")
    if opt.stamps:
        stamp(A, opt, 1, NST1, ST_OFF)
        A("s_mov_b64 s[88:89], s[90:91]")
        A("s_memtime s[94:95]")
        A("s_waitcnt lgkmcnt(0)")
    for (s_, tg) in reads_for(0):
        A.lds(s_, tg)
    NK = 32
    for n in range(NK):
        s, ks = divmod(n, 4)
        nxt = reads_for(n + 1) if n + 1 < NK else []
        order = [(mt, t) for t in range(5) for mt in range(2)]
        need_bar = (ks == 3 and n + 1 < NK)
        A.comment("kstep %d" % n)
        for i, (mt, t) in enumerate(order):
            if need_bar and i == 0:
                A.wait(lg='all')
            else:
                A.wait(lg={("x", n, mt), ("w", n, t)})
            if opt.mf16:
                st_ = n % 2
                for hh in range(2):
                    d = vr(acc(mt, t) + st_ * 8 + hh * 4, 4)
                    A("v_mfma_f32_16x16x32_bf16 %s, %s, %s, %s" % (d, vr(wf(st_, t), 4), vr(xf(st_, mt ^ hh), 4), "0" if n < 2 else d))
                    if need_bar and i == 0 and hh == 0:
                        A("s_barrier")
                    if nxt:
                        s_, tg = nxt.pop(0)
                        A.lds(s_, tg)
                continue
            elif not opt.nomfma:
                A(mfma(n, mt, t))
            if need_bar and i == 0:
                A("s_barrier")
            k = 0
            while nxt and k < 2:
                s_, tg = nxt.pop(0)
                A.lds(s_, tg); k += 1
    if opt.stamps:
        stamp(A, opt, 2, NST1, ST_OFF)
        A("s_memtime s[86:87]")
        A("s_waitcnt lgkmcnt(0)")
        A("s_sub_u32 s86, s86, s94")
        A("s_add_u32 s88, s88, s86")
        A("s_addc_u32 s89, s89, 0")
        A("s_add_u32 s92, s92, 40")
        A("v_mov_b32 v74, s88")
        A("v_mov_b32 v75, s89")
        A.vmem("buffer_store_dwordx2 v[74:75], off, s[40:43], s92", "stamp")
    A("s_nop 7"); A("s_nop 3")
    A("v_and_b32 v8, 16, v0")
    A("v_cmp_eq_u32 vcc, 0, v8")
    A("s_mov_b32 s52, 0x%x" % LOG2E)
    A("s_mov_b32 s53, 0x358637bd")
    A("v_mov_b32 v9, 0x3f803f80")
    for mt in range(2):
        a = acc(mt, 4)
        for r in range(0, 16, 2):
            t0, t1 = 72 + (r % 8), 73 + (r % 8)
            A("v_mul_f32 v%d, s52, v%d" % (t0, a + r))
            A("v_mul_f32 v%d, s52, v%d" % (t1, a + r + 1))
            A("v_exp_f32_e64 v%d, v%d clamp" % (t0, t0))
            A("v_exp_f32_e64 v%d, v%d clamp" % (t1, t1))
            A("v_max_f32 v80, 0, v%d" % (a + r))
            A("v_max_f32 v81, 0, v%d" % (a + r + 1))
            A("v_add_f32 v%d, v%d, v80" % (t0, t0))
            A("v_add_f32 v%d, v%d, v81" % (t1, t1))
            A("v_add_f32 v%d, s53, v%d" % (t0, t0))
            A("v_add_f32 v%d, s53, v%d" % (t1, t1))
            A("v_cndmask_b32 v%d, v%d, v%d, vcc" % (t0, a + r, t0))
            A("v_cndmask_b32 v%d, v%d, v%d, vcc" % (t1, a + r + 1, t1))
            p = 16 + mt * 8 + r // 2
            A("v_cvt_pk_bf16_f32 v%d, v%d, v%d" % (p, t0, t1))
            A("v_cndmask_b32 v%d, v%d, v9, vcc" % (p + 16, p))
    A("s_nop 1")
    KD = 48
    for i in range(4):
        c = "0" if i == 0 else vr(KD, 16)
        A("v_mfma_f32_32x32x16_bf16 %s, %s, %s, %s" % (vr(KD, 16), vr(32 + 4 * i, 4), vr(16 + 4 * i, 4), c))
    PB = WB + 2 * 20480
    A("v_and_b32 v8, 31, v0")
    A("v_lshrrev_b32 v10, 5, v0")
    A("v_lshlrev_b32 v8, 2, v8")
    A("v_lshl_add_u32 v8, v10, 9, v8")
    A("s_lshl_b32 s54, s22, 12")
    A("s_add_u32 s54, s54, 0x%x" % PB)
    A("v_add_u32 v8, s54, v8")
    A("s_nop 7")
    for r in range(8, 16):
        e = 8 * ((r - 8) // 4) + (r % 4)
        A.lds("ds_write_b32 v8, v%d offset:%d" % (KD + r, e * 128))
    A.lds("ds_write_b32 v8, v%d offset:%d" % (KD, 16 * 128))
    A.wait(lg='all')
    A("s_barrier")
    A("v_lshlrev_b32 v8, 4, v0")
    A("s_lshl_b32 s54, s20, 3")
    A("s_lshl_b32 s55, s22, 1")
    A("s_add_u32 s54, s54, s55")
    A("s_cmp_ge_u32 s21, 28")
    A("s_cbranch_scc1 K1_QEPI")
    A("s_mul_i32 s55, s54, 114688")
    A("s_lshl_b32 s56, s21, 12")
    A("s_add_u32 s55, s55, s56")
    A("s_add_u32 s56, s55, 114688")
    pbase = 16
    for mt in range(2):
        for tp in range(2):
            g, u = acc(mt, tp), acc(mt, 2 + tp)
            for i in range(8):
                A("v_pk_mul_f32 %s, %s, %s" % (vr(g + 2 * i, 2), vr(g + 2 * i, 2), vr(u + 2 * i, 2)))
            p = pbase + (mt * 2 + tp) * 8
            for i in range(8):
                A("v_cvt_pk_bf16_f32 v%d, v%d, v%d" % (p + i, g + 2 * i, g + 2 * i + 1))
            for half in range(2):
                A.vmem("buffer_store_dwordx4 %s, v8, s[40:43], s%d offen offset:%d %s" % (vr(p + 4 * half, 4), 55 + mt, (2 * tp + half) * 1024, opt.k1st))
    if opt.stamps:
        A.wait(vm='all')
        stamp(A, opt, 3, NST1, ST_OFF)
    A("s_endpgm")
    A.label("K1_QEPI")
    A.vm = []
    A("s_lshl_b32 s55, s54, 15")
    A("s_sub_u32 s56, s21, 28")
    A("s_lshl_b32 s56, s56, 13")
    A("s_add_u32 s55, s55, s56")
    A("s_add_u32 s55, s55, 0x%x" % Q_OFF)
    A("s_add_u32 s56, s55, 4096")
    A("s_add_u32 s57, s55, 32768")
    A("s_add_u32 s58, s57, 4096")
    for mt in range(2):
        for t in range(4):
            g = acc(mt, t)
            p = 16 + ((mt * 4 + t) % 8) * 8
            for i in range(8):
                A("v_cvt_pk_bf16_f32 v%d, v%d, v%d" % (p + i, g + 2 * i, g + 2 * i + 1))
            for half in range(2):
                A.vmem("buffer_store_dwordx4 %s, v8, s[40:43], s%d offen offset:%d %s" % (vr(p + 4 * half, 4), 55 + mt * 2 + (t >> 1), ((2 * t + half) % 4) * 1024, opt.k1st))
    if opt.stamps:
        A.wait(vm='all')
        stamp(A, opt, 3, NST1, ST_OFF)
    A("s_endpgm")

    A.label("K1_LOADER")
    A.vm = []; A.lg = []
    opt.stv = 40
    A("s_sub_u32 s22, s22, 4")
    A("v_lshrrev_b32 v2, 3, v0")
    A("v_and_b32 v3, 7, v0")
    A("v_lshrrev_b32 v4, 4, v0")
    A("v_xor_b32 v5, v3, v4")
    A("v_lshlrev_b32 v5, 4, v5")
    A("v_lshl_add_u32 v10, v2, 10, v5")
    A("v_xor_b32 v11, 64, v10")
    A("v_and_b32 v6, 1, v4")
    A("v_lshlrev_b32 v6, 2, v6")
    A("v_xor_b32 v6, v3, v6")
    A("v_lshlrev_b32 v6, 4, v6")
    A("v_mad_u32_u24 v12, v2, s58, v6")
    A("v_lshrrev_b32 v2, 2, v0")
    A("v_bfe_u32 v3, v0, 1, 1")
    A("v_and_b32 v4, 1, v0")
    A("v_lshlrev_b32 v4, 4, v4")
    A("v_lshl_add_u32 v4, v3, 10, v4")
    A("v_add_u32 v4, 1024, v4")
    A("s_movk_i32 s52, 3072")
    A("v_mad_u32_u24 v13, v2, s52, v4")
    A("s_lshl_b32 s60, s20, 18")
    A("s_lshl_b32 s52, s22, 16")
    A("s_add_u32 s60, s60, s52")
    A("s_lshl_b32 s52, s21, 7")
    A("s_sub_u32 s53, s21, 28")
    A("s_lshl_b32 s53, s53, 8")
    A("s_add_u32 s54, s53, 128")
    A("s_cmp_lt_u32 s21, 28")
    A("s_cselect_b32 s61, s52, s53")
    A("s_cselect_b32 s62, s52, s54")
    A("s_lshl_b32 s52, s22, 4")
    A("s_mul_i32 s53, s52, s58")
    A("s_add_u32 s61, s61, s53")
    A("s_add_u32 s62, s62, s53")
    A("s_mul_i32 s63, s52, 3072")
    A("s_lshl_b32 s53, s21, 5")
    A("s_add_u32 s63, s63, s53")
    A("s_lshl_b32 s64, s58, 3")
    A("s_lshl_b32 s65, s58, 6")
    A("s_mul_i32 s66, s22, 24576")
    A("s_lshl_b32 s67, s22, 11")
    A("s_add_u32 s67, s67, 0x%x" % WB)
    A("s_lshl_b32 s68, s22, 10")
    A("s_add_u32 s68, s68, 0x%x" % (WB + 16384))

    WIN = opt.k1win
    if WIN == 8:
        A("s_lshl1_add_u32 s72, s20, s21")
    else:
        A("s_add_u32 s72, s20, s21")

    def stage_ops(s):
        slot = s % 3
        tag = ("st", s)
        ops = []
        def pre():
            A("s_add_u32 s76, s72, %d" % s)
            A("s_and_b32 s76, s76, %d" % (WIN - 1))
            if s & ~(WIN - 1): A("s_add_u32 s76, s76, %d" % (s & ~(WIN - 1)))
            A("s_mul_i32 s74, s76, s65")
            A("s_lshl_b32 s73, s76, 7")
            A("s_add_u32 s73, s73, s60")
            A("s_mul_i32 s75, s76, %d" % (64 * 3072))
            A("s_add_u32 s75, s75, s63")
        def xload(a):
            def f():
                A("s_add_u32 m0, s66, %d" % (slot * 8192 + a * 1024))
                A("s_add_u32 s52, s73, %d" % (a * 8192))
                A.vmem("buffer_load_dwordx4 v%d, s[24:27], s52 offen lds" % (10 + (a & 1)), tag)
            return f
        def wload(sreg, srdn, ldsoff, half, first):
            def f():
                if first: pre()
                A("s_add_u32 m0, s67, %d" % (slot * 20480 + ldsoff + 1024 * half))
                A("s_add_u32 s52, s%d, s74" % sreg)
                if half: A("s_add_u32 s52, s52, s64")
                A.vmem("buffer_load_dwordx4 v12, s[%d:%d], s52 offen lds" % (srdn, srdn + 3), tag)
            return f
        def kvload():
            A("s_add_u32 m0, s68, %d" % (slot * 20480))
            A("s_nop 0")
            A.vmem("buffer_load_dwordx4 v13, s[36:39], s75 offen lds", tag)
        ops += [wload(61, 28, 0, 0, True), wload(61, 28, 0, 1, False), wload(62, 32, 8192, 0, False), wload(62, 32, 8192, 1, False), kvload]
        ops += [xload(a) for a in range(8)]
        return ops
    def issue_stage(s):
        for f in stage_ops(s): f()

    if opt.stamps:
        stamp(A, opt, 4, NST1, ST_OFF)
    issue_stage(0)
    A("v_lshlrev_b32 v14, 4, v0")
    A("s_lshl_b32 s70, s21, 11")
    A("s_add_u32 s70, s70, 0x%x" % KVT_OFF)
    A("s_or_b32 s71, s20, s22")
    A("v_mov_b32 v32, 0"); A("v_mov_b32 v33, 0"); A("v_mov_b32 v34, 0"); A("v_mov_b32 v35, 0")
    A("s_cmp_lg_u32 s71, 0")
    A("s_cbranch_scc1 K1_NOZERO")
    A("buffer_store_dwordx4 v[32:35], v14, s[40:43], s70 offen sc0 sc1")
    A("buffer_store_dwordx4 v[32:35], v14, s[40:43], s70 offen offset:1024 sc0 sc1")
    A("s_nop 1")
    A.label("K1_NOZERO")
    st1 = stage_ops(1)
    for f in st1[:opt.k1eb]: f()
    if opt.stamps:
        stamp(A, opt, 5, NST1, ST_OFF)

    def gate_loads():
        A("v_lshrrev_b32 v2, 5, v0")
        A("v_and_b32 v3, 31, v0")
        A("v_lshlrev_b32 v3, 5, v3")
        A("v_lshl_add_u32 v4, v2, 10, v3")
        A("s_lshl_b32 s69, s20, 8")
        A("s_lshl_b32 s52, s21, 3")
        A("s_add_u32 s69, s69, s52")
        A("s_lshl_b32 s52, s22, 1")
        A("s_add_u32 s69, s69, s52")
        A("s_lshl_b32 s52, s69, 10")
        A.vmem("buffer_load_dwordx4 v[16:19], v4, s[24:27], s52 offen", "g")
        A.vmem("buffer_load_dwordx4 v[20:23], v4, s[24:27], s52 offen offset:16", "g")
        A.vmem("buffer_load_dwordx4 v[24:27], v3, s[48:51], 0 offen", "g")
        A.vmem("buffer_load_dwordx4 v[28:31], v3, s[48:51], 0 offen offset:16", "g")

    def gate_compute():
        A.wait(vm={"g"})
        accv = 38
        first = True
        for i in range(8):
            xr_, wr_ = 16 + i, 24 + i
            A("v_lshlrev_b32 v32, 16, v%d" % xr_)
            A("v_and_b32 v33, 0xffff0000, v%d" % xr_)
            A("v_lshlrev_b32 v34, 16, v%d" % wr_)
            A("v_and_b32 v35, 0xffff0000, v%d" % wr_)
            A("v_mul_f32 v32, v32, v34")
            A("v_mul_f32 v33, v33, v35")
            A("v_cvt_pk_bf16_f32 v32, v32, v33")
            A("v_and_b32 v33, 0xffff0000, v32")
            A("v_lshlrev_b32 v32, 16, v32")
            if first:
                A("v_add_f32 v%d, v32, v33" % accv); first = False
            else:
                A("v_add_f32 v%d, v%d, v32" % (accv, accv))
                A("v_add_f32 v%d, v%d, v33" % (accv, accv))
        for off in (0x041F, 0x081F, 0x101F, 0x201F, 0x401F):
            A("ds_swizzle_b32 v32, v%d offset:0x%x" % (accv, off))
            A("s_waitcnt lgkmcnt(0)")
            A("v_add_f32 v%d, v%d, v32" % (accv, accv))
        A("v_cvt_pk_bf16_f32 v32, v%d, v%d" % (accv, accv))
        A("v_lshlrev_b32 v32, 16, v32")
        A("v_mul_f32 v32, 0xbfb8aa3b, v32")
        A("v_exp_f32 v32, v32")
        A("s_nop 0")
        A("v_add_f32 v32, 1.0, v32")
        A("v_rcp_f32 v32, v32")
        A("s_nop 0")
        A("v_cvt_pk_bf16_f32 v32, v32, v32")
        A("v_lshlrev_b32 v32, 16, v32")
        A("v_sub_f32 v33, 1.0, v32")
        A("v_cvt_pk_bf16_f32 v33, v33, v33")
        A("v_lshlrev_b32 v33, 16, v33")
        A("v_lshrrev_b32 v2, 5, v0")
        A("v_lshlrev_b32 v2, 3, v2")
        A("s_lshl_b32 s52, s69, 3")
        A("s_add_u32 s52, s52, 0x%x" % G_OFF)
        A.vmem("buffer_store_dwordx2 v[32:33], v2, s[40:43], s52 offen", "gst")

    for s in range(8):
        A.wait(vm={("st", s)})
        if opt.stamps:
            stamp(A, opt, 8 + s, NST1, ST_OFF)
        A("s_barrier")
        if s == 0:
            for f in st1[opt.k1eb:]: f()
        if s + 2 <= 7:
            issue_stage(s + 2)
        if s == 1:
            A("s_cmp_lg_u32 s71, 0")
            A("s_cbranch_scc1 K1_NOFLAG")
            A("v_mov_b32 v37, 1")
            A("s_lshl_b32 s52, s21, 2")
            A("buffer_store_dword v37, off, s[44:47], s52 sc0 sc1")
            A.label("K1_NOFLAG")
        if s == 5:
            gate_loads()
        if s == 6:
            A("s_lshl_b32 s52, s21, 2")
            A.vmem("buffer_load_dword v36, off, s[44:47], s52 sc0 sc1", "flag")
        if s == 7:
            gate_compute()
    A("s_lshl_b32 s52, s22, 6")
    A("v_add_u32 v2, s52, v0")
    A("v_lshrrev_b32 v3, 4, v2")
    A("v_and_b32 v4, 3, v2")
    A("v_bfe_u32 v5, v2, 2, 1")
    A("v_bfe_u32 v6, v2, 3, 1")
    A("v_lshl_add_u32 v4, v5, 3, v4")
    A("v_lshl_add_u32 v4, v6, 2, v4")
    A("v_lshlrev_b32 v4, 2, v4")
    A("v_lshl_add_u32 v5, v3, 7, v4")
    A("v_add_u32 v5, 0x%x, v5" % PB)
    A("v_add_u32 v6, 0x%x, v4" % (PB + 16 * 128))
    A("v_lshlrev_b32 v7, 2, v2")
    A.wait(vm='all')
    A.label("K1_POLL")
    A("v_readfirstlane_b32 s52, v36")
    A("s_cmp_lg_u32 s52, 0")
    A("s_cbranch_scc1 K1_POLLED")
    A("s_sleep 1")
    A("s_lshl_b32 s52, s21, 2")
    A("buffer_load_dword v36, off, s[44:47], s52 sc0 sc1")
    A("s_waitcnt vmcnt(0)")
    A("s_branch K1_POLL")
    A.label("K1_POLLED")
    A("s_barrier")
    for w in range(4):
        A("ds_read_b32 v%d, v5 offset:%d" % (16 + w, w * 4096))
    for w in range(4):
        A("ds_read_b32 v%d, v6 offset:%d" % (20 + w, w * 4096))
    A("s_waitcnt lgkmcnt(0)")
    A("v_add_f32 v16, v16, v17"); A("v_add_f32 v18, v18, v19"); A("v_add_f32 v16, v16, v18")
    A("v_add_f32 v20, v20, v21"); A("v_add_f32 v22, v22, v23"); A("v_add_f32 v20, v20, v22")
    A("buffer_atomic_add_f32 v16, v7, s[40:43], s70 offen")
    A("v_cmp_gt_u32 vcc, 16, v2")
    A("s_and_saveexec_b64 s[52:53], vcc")
    A("s_cbranch_execz K1_NOZ")
    A("buffer_atomic_add_f32 v20, v7, s[40:43], s70 offen offset:1024")
    A.label("K1_NOZ")
    A("s_mov_b64 exec, s[52:53]")
    if opt.stamps:
        A("s_waitcnt vmcnt(0)")
        stamp(A, opt, 6, NST1, ST_OFF)
    A.label("K1_END")
    A("s_endpgm")
    return A.text()

def kd(name, vgpr, sgpr, accum):
    return """.p2align 6
.amdhsa_kernel %s
  .amdhsa_next_free_vgpr %d
  .amdhsa_next_free_sgpr %d
  .amdhsa_accum_offset %d
  .amdhsa_group_segment_fixed_size 0
  .amdhsa_kernarg_size 88
  .amdhsa_user_sgpr_count 2
  .amdhsa_user_sgpr_kernarg_segment_ptr 1
  .amdhsa_system_sgpr_workgroup_id_x 1
  .amdhsa_float_denorm_mode_32 3
.end_amdhsa_kernel
""" % (name, vgpr, sgpr, accum)

HEADER = open("cdna_kernels/%s.s.ref" % NAME).read().split("; Override launch")[0]

def main():
    ap = argparse.ArgumentParser()
    ap.add_argument("-o", default="out.s")
    ap.add_argument("--stamps", action="store_true")
    ap.add_argument("--nomfma", action="store_true")
    ap.add_argument("--k1map", type=int, default=0)
    ap.add_argument("--k2map", type=int, default=0)
    ap.add_argument("--only", type=str, default="")
    ap.add_argument("--k2rot", type=int, default=1)
    ap.add_argument("--dbgout", action="store_true")
    ap.add_argument("--k2dep", type=int, default=8)
    ap.add_argument("--k2ha", type=int, default=3)
    ap.add_argument("--k2prio", type=int, default=2)
    ap.add_argument("--mf16", action="store_true")
    ap.add_argument("--k1win", type=int, default=8)
    ap.add_argument("--k1eb", type=int, default=13)
    ap.add_argument("--k1st", type=str, default="")
    ap.add_argument("--k2order", type=int, default=0)
    ap.add_argument("--k2pump", type=int, default=8)
    opt = ap.parse_args()
    out = HEADER
    launches = []
    if opt.only != "k2":
        launches.append("; @launch kernel=k1_kernel grid=(256,1,1) block=(512,1,1) lds=%d" % K1_LDS)
    if opt.only != "k1":
        import gen2
        launches.append("; @launch kernel=k2_kernel grid=(256,1,1) block=(%d,1,1) lds=%d" % (gen2.K2_THREADS, gen2.K2_LDS))
    out += "\n".join(launches) + "\n"
    out += '.amdgcn_target "amdgcn-amd-amdhsa--gfx950"\n.text\n'
    if opt.only != "k2":
        out += k1(opt)
    if opt.only != "k1":
        out += gen2.k2(opt)
    out += '.section .rodata,"a"\n'
    if opt.only != "k2":
        out += kd("k1_kernel", 256, 96, 256)
    if opt.only != "k1":
        out += kd("k2_kernel", gen2.K2_VGPR, 96, 256)
    open(opt.o, "w").write(out)

if __name__ == "__main__":
    main()
```

```python
import sys, argparse
from gen import Asm, vr, sr, srd, kd, NAME, HEADER, LOG2E
import hz

H_OFF   = 0x0
Q_OFF   = 0x700000
KVT_OFF = 0x900000
KVF     = 1152
HF      = 1280
G_OFF   = 0x910000
ST_OFF  = 0x1000000
WS_SIZE = 0x2000000
NST = 32
WB = 98304
LDS = 163840
PB = WB + 2 * 20480
SPIN = 40000

def stamp(A, opt, idx):
    if not opt.stamps: return
    A("s_memrealtime s[96:97]")
    A("s_waitcnt lgkmcnt(0)")
    A.lg = []
    A("v_writelane_b32 v15, s96, %d" % idx)

def fused(opt):
    A = Asm()
    KN = NAME + "_kernel"
    A.raw(".globl %s\n.p2align 8\n.type %s,@function\n%s:" % (KN, KN, KN))
    A("s_cmp_ge_u32 s2, 256")
    A("s_cbranch_scc1 L_END")
    A("s_load_dwordx4 s[4:7], s[0:1], 0")
    A("s_load_dwordx4 s[8:11], s[0:1], 32")
    A("s_load_dwordx4 s[16:19], s[0:1], 72")
    A("s_load_dwordx4 s[12:15], s[0:1], 48")
    A("s_load_dwordx2 s[84:85], s[0:1], 64")
    A("s_load_dwordx2 s[86:87], s[0:1], 16")
    A("s_and_b32 s20, s2, 7")
    A("s_lshr_b32 s21, s2, 3")
    A("s_and_b32 s53, s21, 3")
    A("s_lshr_b32 s78, s21, 2")
    A("s_and_b32 s52, s20, 1")
    A("s_lshr_b32 s54, s20, 1")
    A("s_lshl2_add_u32 s77, s52, s54")
    A("s_lshl2_add_u32 s77, s77, s53")
    A("s_lshl2_add_u32 s20, s52, s53")
    A("s_lshl3_add_u32 s21, s54, s78")
    A("v_lshrrev_b32 v1, 6, v0")
    A("v_and_b32 v0, 63, v0")
    A("s_nop 0")
    A("v_readfirstlane_b32 s23, v1")
    A("s_and_b32 s22, s23, 3")
    A("s_waitcnt lgkmcnt(0)")
    srd(A, 40, 18, WS_SIZE)
    if opt.stamps:
        A("v_mov_b32 v15, 0")
        stamp(A, opt, 0)
    A("s_cmp_ge_u32 s23, 4")
    A("s_cbranch_scc1 L_LOADER")

    ACC2 = 192
    def acc2(t, mt): return ACC2 + (t * 2 + mt) * 16

    def w2_voffs():
        A("v_lshrrev_b32 v4, 3, v0")
        A("v_and_b32 v5, 7, v0")
        A("v_lshlrev_b32 v5, 4, v5")
        A("v_lshl_add_u32 v5, v4, 11, v5")
        A("s_lshl_b32 s52, s78, 7")
        A("v_add_u32 v6, s52, v5")
        A("v_xor_b32 v7, 64, v6")
    def tr_addrs(base_s):
        A("v_bfe_u32 v8, v0, 1, 1")
        A("v_bfe_u32 v4, v0, 4, 1")
        A("v_lshl_add_u32 v8, v4, 1, v8")
        A("v_bfe_u32 v4, v0, 2, 1")
        A("v_lshl_add_u32 v8, v4, 2, v8")
        A("v_lshlrev_b32 v8, 4, v8")
        A("v_lshl_add_u32 v8, v4, 10, v8")
        A("v_and_b32 v4, 1, v0")
        A("v_lshl_add_u32 v8, v4, 3, v8")
        A("v_bfe_u32 v4, v0, 3, 1")
        A("v_lshl_add_u32 v8, v4, 7, v8")
        A("v_lshrrev_b32 v4, 5, v0")
        A("v_lshl_add_u32 v8, v4, 8, v8")
        A("v_add_u32 v8, s%d, v8" % base_s)
        A("v_xor_b32 v9, 64, v8")
    def tr_reads(off, dst, tag):
        for t in range(2):
            for rd in range(2):
                A.lds("ds_read_b64_tr_b16 %s, v%d offset:%d" % (vr(dst + 4 * t + 2 * rd, 2), 8 + t, off + rd * 512), tag + (t,))
    def poll_h(lbl, mask_s):
        A("s_movk_i32 s57, 0x%x" % min(SPIN, 0x7fff))
        A.label(lbl)
        A("buffer_load_dword v4, v3, s[40:43], s83 offen sc1")
        A("s_waitcnt vmcnt(0)")
        A("v_cmp_ne_u32 vcc, 0, v4")
        A("s_and_b32 s52, vcc_lo, s%d" % mask_s)
        A("s_cmp_eq_u32 s52, s%d" % mask_s)
        A("s_cbranch_scc1 %s_OK" % lbl)
        if opt.psleep: A("s_sleep %d" % opt.psleep)
        A("s_sub_u32 s57, s57, 1")
        A("s_cmp_lg_u32 s57, 0")
        A("s_cbranch_scc1 %s" % lbl)
        A.label(lbl + "_OK")
        A.vm = []
    def hflag_addr():
        A("v_and_b32 v3, 31, v0")
        A("v_lshlrev_b32 v3, 2, v3")
        A("s_lshl_b32 s83, s77, 11")
        A("s_add_u32 s83, s83, 0x%x" % (KVT_OFF + HF))
    def g_load(dst):
        A("v_lshrrev_b32 v4, 3, v0")
        A("v_lshlrev_b32 v4, 3, v4")
        A("s_lshl_b32 s52, s77, 9")
        A("s_lshl_b32 s53, s23, 6")
        A("s_add_u32 s52, s52, s53")
        A("s_add_u32 s52, s52, 0x%x" % G_OFF)
        A.vmem("buffer_load_dwordx2 %s, v4, s[40:43], s52 offen sc1" % vr(dst, 2), "g")
    def write_partial(base_s, tmp):
        A("v_and_b32 v%d, 31, v0" % tmp)
        A("v_lshrrev_b32 v%d, 5, v0" % (tmp + 1))
        A("v_and_b32 v%d, 7, v0" % (tmp + 2))
        A("v_xor_b32 v%d, v%d, v%d" % (tmp + 1, tmp + 1, tmp + 2))
        A("v_lshlrev_b32 v%d, 4, v%d" % (tmp + 1, tmp + 1))
        A("v_lshl_add_u32 v%d, v%d, 8, v%d" % (tmp, tmp, tmp + 1))
        A("v_add_u32 v%d, s%d, v%d" % (tmp, base_s, tmp))
        for g4 in range(1, 4):
            A("v_xor_b32 v%d, %d, v%d" % (tmp + g4, g4 * 32, tmp))
        return [("ds_write_b128 v%d, %s offset:%d" % (tmp + g4, vr(acc2(t, mt) + 4 * g4, 4), mt * 8192 + t * 128))
                for t in range(2) for mt in range(2) for g4 in range(4)]

    def lohi_srd(d, which):
        A("s_cmp_lt_u32 s21, 28")
        A("s_cselect_b32 s%d, s%d, s6" % (d, 8 + 2 * which))
        A("s_cselect_b32 s%d, s%d, s7" % (d + 1, 9 + 2 * which))
        A("s_mov_b32 s56, 0x%x" % (512 * 1792 * 2))
        A("s_mov_b32 s57, 0x%x" % (512 * 1536 * 2))
        A("s_cselect_b32 s%d, s56, s57" % (d + 2))
        A("s_movk_i32 s56, 3584")
        A("s_movk_i32 s57, 3072")
        A("s_cselect_b32 s58, s56, s57")
        A("s_and_b32 s%d, s%d, 0xffff" % (d + 1, d + 1))
        A("s_mov_b32 s%d, 0x20000" % (d + 3))
    def pf_x(st0, dst, vt):
        A("v_and_b32 v%d, 31, v0" % vt)
        A("v_lshrrev_b32 v%d, 5, v0" % (vt + 1))
        A("v_lshlrev_b32 v%d, 10, v%d" % (vt, vt))
        A("v_lshl_add_u32 v%d, v%d, 7, v%d" % (vt, vt + 1, vt))
        A("s_lshl3_add_u32 s52, s20, s78")
        A("s_lshl_b32 s52, s52, 15")
        A.vmem("buffer_load_dword v%d, v%d, s[24:27], s52 offen offset:%d %s" % (dst, vt, st0 * 128, opt.pfpol), "pf")
    def pf_w(which, st0, dst, vt):
        A("v_and_b32 v%d, 15, v0" % vt)
        A("v_lshrrev_b32 v%d, 4, v0" % (vt + 1))
        A("v_lshl_add_u32 v%d, v%d, 6, v%d" % (vt, vt + 1, vt))
        A("v_mul_u32_u24 v%d, s58, v%d" % (vt, vt))
        A("s_lshl_b32 s52, s21, 7")
        A("s_sub_u32 s53, s21, 28")
        A("s_lshl_b32 s53, s53, 8")
        if which: A("s_add_u32 s53, s53, 128")
        A("s_cmp_lt_u32 s21, 28")
        A("s_cselect_b32 s52, s52, s53")
        A("s_and_b32 s53, s20, 3")
        A("s_lshl_b32 s53, s53, 4")
        A("s_add_u32 s53, s53, %d" % (st0 * 64))
        A("s_mul_i32 s53, s53, s58")
        A("s_add_u32 s52, s52, s53")
        A.vmem("buffer_load_dword v%d, v%d, s[%d:%d], s52 offen %s" % (dst, vt, 28 + 4 * which, 31 + 4 * which, opt.pfpol), "pf")
    def pf_kv(dst, vt):
        A("v_and_b32 v%d, 3, v0" % vt)
        A("v_lshrrev_b32 v%d, 3, v0" % (vt + 1))
        A("v_lshl_add_u32 v%d, v%d, 6, v%d" % (vt, vt + 1, vt))
        A("v_mul_u32_u24 v%d, 3072, v%d" % (vt, vt))
        A("v_bfe_u32 v%d, v0, 2, 1" % (vt + 1))
        A("v_lshl_add_u32 v%d, v%d, 10, v%d" % (vt, vt + 1, vt))
        A("s_and_b32 s53, s20, 3")
        A("s_and_b32 s52, s78, 3")
        A("s_lshl2_add_u32 s53, s53, s52")
        A("s_mul_i32 s53, s53, %d" % (4 * 3072))
        A("s_lshl_b32 s52, s21, 5")
        A("s_add_u32 s52, s52, s53")
        A.vmem("buffer_load_dword v%d, v%d, s[36:39], s52 offen offset:1024 %s" % (dst, vt, opt.pfpol), "pf")

    opt.stv = 72
    if opt.cpf:
        A("s_cmp_eq_u32 s22, 1"); A("s_cbranch_scc1 L_P1_1")
        A("s_cmp_eq_u32 s22, 2"); A("s_cbranch_scc1 L_P1_2")
        A("s_cmp_eq_u32 s22, 3"); A("s_cbranch_scc1 L_P1_3")
        srd(A, 24, 4, 2048 * 512 * 2); pf_x(0, 90, 91); A("s_branch L_P1_D")
        A.label("L_P1_1"); lohi_srd(28, 0); pf_w(0, 0, 90, 91); A("s_branch L_P1_D")
        A.label("L_P1_2"); lohi_srd(32, 1); pf_w(1, 0, 90, 91); A("s_branch L_P1_D")
        A.label("L_P1_3"); srd(A, 36, 6, 512 * 1536 * 2); pf_kv(90, 91)
        A.label("L_P1_D")
        A.vm = []
    A("v_and_b32 v8, 31, v0")
    A("v_lshrrev_b32 v9, 5, v0")
    A("v_bfe_u32 v10, v0, 1, 3")
    A("v_xor_b32 v10, v10, v9")
    A("v_lshlrev_b32 v10, 4, v10")
    A("v_lshl_add_u32 v10, v8, 7, v10")
    A("s_mul_i32 s52, s22, 24576")
    A("v_add_u32 v1, s52, v10")
    A("v_xor_b32 v2, 32, v1")
    A("v_xor_b32 v3, 64, v1")
    A("v_xor_b32 v4, 96, v1")
    A("v_bfe_u32 v10, v0, 2, 2")
    A("v_and_b32 v11, 3, v0")
    A("v_bfe_u32 v12, v0, 4, 1")
    A("v_lshrrev_b32 v13, 1, v11")
    A("v_lshl_add_u32 v13, v12, 1, v13")
    A("v_bfe_u32 v14, v0, 3, 1")
    A("v_lshlrev_b32 v14, 2, v14")
    A("v_xor_b32 v13, v13, v14")
    A("v_lshlrev_b32 v13, 4, v13")
    A("v_and_b32 v14, 1, v11")
    A("v_lshl_add_u32 v13, v14, 3, v13")
    A("v_lshl_add_u32 v13, v10, 7, v13")
    A("v_lshl_add_u32 v13, v9, 10, v13")
    A("v_add_u32 v5, 0x%x, v13" % WB)
    A("v_xor_b32 v6, 64, v5")
    A("v_lshlrev_b32 v13, 3, v11")
    A("v_lshl_add_u32 v13, v12, 5, v13")
    A("v_lshl_add_u32 v13, v10, 6, v13")
    A("v_lshl_add_u32 v13, v9, 9, v13")
    A("v_add_u32 v7, 0x%x, v13" % (WB + 16384))
    srd(A, 88, 86, 512 * 512 * 2)
    srd(A, 92, 84, 2048 * 512 * 2)
    A("v_lshlrev_b32 v8, 4, v0")
    A("s_lshl_b32 s54, s20, 3")
    A("s_lshl_b32 s55, s22, 1")
    A("s_add_u32 s54, s54, s55")
    A("s_mul_i32 s60, s54, 114688")
    A("s_lshl_b32 s56, s21, 12")
    A("s_add_u32 s60, s60, s56")
    A("s_add_u32 s61, s60, 114688")
    A("s_lshl_b32 s62, s54, 15")
    A("s_sub_u32 s56, s21, 28")
    A("s_lshl_b32 s56, s56, 13")
    A("s_add_u32 s62, s62, s56")
    A("s_add_u32 s62, s62, 0x%x" % Q_OFF)
    A("s_add_u32 s63, s62, 4096")
    A("s_add_u32 s64, s62, 32768")
    A("s_add_u32 s65, s64, 4096")
    A("s_lshl2_add_u32 s66, s20, s22")
    A("s_lshl_b32 s66, s66, 11")
    A("s_lshl2_add_u32 s66, s21, s66")
    A("s_add_u32 s66, s66, 0x%x" % (KVT_OFF + HF))
    A("v_and_b32 v9, 31, v0")
    A("v_lshrrev_b32 v10, 5, v0")
    A("v_lshlrev_b32 v9, 2, v9")
    A("v_lshl_add_u32 v9, v10, 9, v9")
    A("s_lshl_b32 s54, s22, 12")
    A("s_add_u32 s54, s54, 0x%x" % PB)
    A("v_add_u32 v9, s54, v9")
    A("v_mov_b32 v10, 0x3f803f80")
    A("v_mov_b32 v11, 1")
    A("s_mov_b32 s67, 0x%x" % LOG2E)
    A("s_mov_b32 s68, 0x358637bd")
    A("s_mov_b32 s69, 0xffff0000")

    if opt.touch:
        A("s_cmp_lt_u32 s21, 28")
        A("s_cselect_b32 s52, s60, s62")
        A("s_cselect_b32 s53, s61, s64")
        A("buffer_load_dword v93, off, s[40:43], s52")
        A("buffer_load_dword v94, off, s[40:43], s53")
        A("buffer_load_dword v95, off, s[40:43], s66 offset:256")
        A("s_lshl_b32 s52, s77, 16")
        A("buffer_load_dword v89, off, s[92:95], s52")
        A("v_and_b32 v88, 3, v0")
        A("v_lshlrev_b32 v88, 7, v88")
        A("s_lshl2_add_u32 s52, s2, s22")
        A("s_lshl_b32 s52, s52, 9")
        A("buffer_load_dword v88, v88, s[88:91], s52 offen")
    ACC = 96
    def acc(mt, t): return ACC + (mt * 5 + t) * 16
    FR = [16, 44]
    def xf(st, mt): return FR[st] + mt * 4
    def wf(st, t): return FR[st] + 8 + t * 4
    def reads_for(n):
        s, ks = divmod(n, 4); slot = s % 3; st = n % 2
        out = []
        def xr(mt):
            out.append(("ds_read_b128 %s, v%d offset:%d" % (vr(xf(st, mt), 4), 1 + ks, slot * 8192 + mt * 4096), ("x", n, mt)))
        def wr(t):
            for rd in range(2):
                if t < 4:
                    off = slot * 20480 + ks * 2048 + rd * 512 + (8192 if t >= 2 else 0)
                    a = 5 + (t & 1)
                else:
                    off = slot * 20480 + ks * 1024 + rd * 256
                    a = 7
                out.append(("ds_read_b64_tr_b16 %s, v%d offset:%d" % (vr(wf(st, t) + 2 * rd, 2), a, off), ("w", n, t)))
        xr(0); wr(0); xr(1); wr(1); wr(2); wr(3); wr(4)
        return out
    def mfma(n, mt, t):
        st = n % 2
        c = "0" if n == 0 else vr(acc(mt, t), 16)
        if t < 4:
            return "v_mfma_f32_32x32x16_bf16 %s, %s, %s, %s" % (vr(acc(mt, t), 16), vr(wf(st, t), 4), vr(xf(st, mt), 4), c)
        return "v_mfma_f32_32x32x16_bf16 %s, %s, %s, %s" % (vr(acc(mt, t), 16), vr(xf(st, mt), 4), vr(wf(st, t), 4), c)

    if opt.warm:
        A("s_mov_b32 s59, 1")
        A("s_branch L_KVEPI2")
        A.label("L_WARMBACK")
    A("s_mov_b32 s59, 0")
    stamp(A, opt, 11)
    A("s_barrier")
    stamp(A, opt, 1)
    for (s_, tg) in reads_for(0):
        A.lds(s_, tg)
    NK = 32
    for n in range(NK):
        s, ks = divmod(n, 4)
        nxt = reads_for(n + 1) if n + 1 < NK else []
        order = [(mt, t) for t in range(5) for mt in range(2)]
        if n == NK - 1:
            order = [(0, 0), (0, 2), (0, 1), (0, 3), (1, 0), (1, 2), (1, 1), (1, 3), (0, 4), (1, 4)]
        need_bar = (ks == 3)
        A.comment("kstep %d" % n)
        for i, (mt, t) in enumerate(order):
            if need_bar and i == 0:
                A.wait(lg='all')
            else:
                A.wait(lg={("x", n, mt), ("w", n, t)})
            A(mfma(n, mt, t))
            if need_bar and i == 0:
                A("s_barrier")
            k = 0
            while nxt and k < 2:
                s_, tg = nxt.pop(0)
                A.lds(s_, tg); k += 1
    stamp(A, opt, 2)
    A("s_cmp_ge_u32 s21, 28")
    A("s_cbranch_scc1 L_QEPI")
    for mt in range(2):
        for tp in range(2):
            g, u = acc(mt, tp), acc(mt, 2 + tp)
            p = 16 + (mt * 2 + tp) * 8
            for half in range(2):
                for i in range(4 * half, 4 * half + 4):
                    A("v_pk_mul_f32 %s, %s, %s" % (vr(g + 2 * i, 2), vr(g + 2 * i, 2), vr(u + 2 * i, 2)))
                for i in range(4 * half, 4 * half + 4):
                    A("v_cvt_pk_bf16_f32 v%d, v%d, v%d" % (p + i, g + 2 * i, g + 2 * i + 1))
                A.vmem("buffer_store_dwordx4 %s, v8, s[40:43], s%d offen offset:%d sc1" % (vr(p + 4 * half, 4), 60 + mt, (2 * tp + half) * 1024))
    A("s_branch L_KVEPI")
    A.label("L_QEPI")
    A("s_nop 7")
    for mt in range(2):
        for t in (0, 2, 1, 3):
            g = acc(mt, t)
            p = 16 + ((mt * 4 + t) % 8) * 8
            if p >= 72: p += 8
            for half in range(2):
                for i in range(4 * half, 4 * half + 4):
                    A("v_cvt_pk_bf16_f32 v%d, v%d, v%d" % (p + i, g + 2 * i, g + 2 * i + 1))
                A("buffer_store_dwordx4 %s, v8, s[40:43], s%d offen offset:%d sc1" % (vr(p + 4 * half, 4), 62 + mt * 2 + (t >> 1), ((2 * t + half) % 4) * 1024))
    A.label("L_KVEPI")
    stamp(A, opt, 3)
    A.label("L_KVEPI2")
    A("v_and_b32 v12, 16, v0")
    A("v_cmp_eq_u32 vcc, 0, v12")
    PP, AA, KD, TT = 96, 112, 128, 144
    for mt in range(2):
        a = acc(mt, 4)
        for r in range(0, 16, 2):
            t0, t1 = TT + (r % 8), TT + 1 + (r % 8)
            A("v_mul_f32 v%d, s67, v%d" % (t0, a + r))
            A("v_mul_f32 v%d, s67, v%d" % (t1, a + r + 1))
            A("v_exp_f32_e64 v%d, v%d clamp" % (t0, t0))
            A("v_exp_f32_e64 v%d, v%d clamp" % (t1, t1))
            A("v_max_f32 v12, s68, v%d" % (a + r))
            A("v_max_f32 v13, s68, v%d" % (a + r + 1))
            A("v_add_f32 v%d, v%d, v12" % (t0, t0))
            A("v_add_f32 v%d, v%d, v13" % (t1, t1))
            A("v_cndmask_b32 v%d, v%d, v%d, vcc" % (t0, a + r, t0))
            A("v_cndmask_b32 v%d, v%d, v%d, vcc" % (t1, a + r + 1, t1))
            p = PP + mt * 8 + r // 2
            A("v_cvt_pk_bf16_f32 v%d, v%d, v%d" % (p, t0, t1))
            A("v_cndmask_b32 v%d, v%d, v10, vcc" % (p + 16, p))
            if r % 8 == 6:
                i = mt * 2 + r // 8
                c = "0" if i == 0 else vr(KD, 16)
                A("v_mfma_f32_32x32x16_bf16 %s, %s, %s, %s" % (vr(KD, 16), vr(AA + 4 * i, 4), vr(PP + 4 * i, 4), c))
    if opt.warm:
        A("s_cmp_eq_u32 s59, 1")
        A("s_cbranch_scc1 L_WARMBACK")
    stamp(A, opt, 12)
    for r in range(8, 16):
        e = 8 * ((r - 8) // 4) + (r % 4)
        A.lds("ds_write_b32 v9, v%d offset:%d" % (KD + r, e * 128))
    A.lds("ds_write_b32 v9, v%d offset:%d" % (KD, 16 * 128))
    A.wait(lg='all')
    stamp(A, opt, 10)
    A("s_barrier")
    if opt.aprio: A("s_setprio %d" % opt.aprio)
    A("s_and_b32 s53, s77, 3")
    A("s_lshl1_add_u32 s56, s53, s78")
    for h in range(8):
        A("s_add_u32 s57, s56, %d" % h)
        A("s_and_b32 s57, s57, 7")
        A("s_lshl_b32 s%d, s57, 10" % (24 + h))
    w2_voffs()
    A("s_lshl_b32 s62, s22, 14")
    A("s_add_u32 s62, s62, 0x%x" % WB)
    A("s_lshl_b32 s64, s22, 17")
    A("s_barrier")
    stamp(A, opt, 4)
    A("s_waitcnt vmcnt(0)")
    A.vm = []
    A.vmem("buffer_store_dword v11, off, s[40:43], s66 sc1")
    stamp(A, opt, 5)
    def wo_loads(h):
        A("s_add_u32 m0, s62, %d" % (h * 2048))
        A("s_lshl4_add_u32 s52, s%d, s64" % (24 + h))
        A.vmem("buffer_load_dwordx4 v6, s[88:91], s52 offen lds", ("w", h))
        A.vmem("buffer_load_dwordx4 v7, s[88:91], s52 offen offset:1024 lds", ("w", h))
    for h in range(8): wo_loads(h)
    opt.stv = 30
    A("s_lshl_b32 s52, s77, 16")
    A("s_lshl_b32 s53, s22, 13")
    A("s_add_u32 s52, s52, s53")
    A("s_add_u32 s52, s52, 0x%x" % Q_OFF)
    A("v_add_u32 v1, s52, v8")
    A("v_add_u32 v2, 0x8000, v1")
    tr_addrs(62)
    hflag_addr()
    A("v_and_b32 v14, 31, v0")
    A("v_lshrrev_b32 v13, 5, v0")
    A("v_min_u32 v5, 16, v14")
    A("v_lshlrev_b32 v5, 6, v5")
    A("v_lshl_add_u32 v5, v13, 5, v5")
    A("s_lshl_b32 s52, s22, 14")
    A("s_add_u32 s52, s52, 0x%x" % KVT_OFF)
    A("v_add_u32 v5, s52, v5")
    A("v_lshrrev_b32 v12, 3, v0")
    A("v_and_b32 v13, 7, v0")
    A("v_lshlrev_b32 v13, 4, v13")
    A("v_lshl_add_u32 v12, v12, 11, v13")
    A("s_add_u32 s63, s52, %d" % KVF)
    A("s_add_u32 s52, s22, 28")
    A("s_lshl_b32 s60, 1, s52")
    A("s_and_b32 s53, s77, 3")
    A("s_lshl3_add_u32 s53, s53, s23")
    A("s_lshl_b32 s53, 1, s53")
    A("s_or_b32 s60, s60, s53")
    poll_h("L_APOLL", 60)
    stamp(A, opt, 6)
    QR = 64; KVR = 128; OD = 32
    def qr(h, mt): return QR + 8 * h + 4 * mt
    for h in range(8):
        A.vmem("buffer_load_dwordx4 %s, v1, s[40:43], s%d offen sc1" % (vr(qr(h, 0), 4), 24 + h), ("q", h, 0))
        A.vmem("buffer_load_dwordx4 %s, v2, s[40:43], s%d offen sc1" % (vr(qr(h, 1), 4), 24 + h), ("q", h, 1))
    g_load(10)
    V = A
    def P(h):
        for mt in range(2):
            A.wait(vm={("q", h, mt)})
            q = qr(h, mt)
            for j in range(0, 4, 2):
                for jj in range(2):
                    t = 24 + 2 * jj
                    V("v_lshlrev_b32 v%d, 16, v%d" % (t, q + j + jj))
                    V("v_and_b32 v%d, s69, v%d" % (t + 1, q + j + jj))
                for x in range(4):
                    V("v_mul_f32 v%d, s67, v%d" % (32 + x, 24 + x))
                for x in range(4):
                    V("v_exp_f32_e64 v%d, v%d clamp" % (32 + x, 32 + x))
                    V("v_max_f32 v%d, s68, v%d" % (24 + x, 24 + x))
                for x in range(4):
                    V("v_add_f32 v%d, v%d, v%d" % (24 + x, 24 + x, 32 + x))
                for jj in range(2):
                    t = 24 + 2 * jj
                    V("v_cvt_pk_bf16_f32 v%d, v%d, v%d" % (q + j + jj, t, t + 1))
    def C(h):
        A.wait(vm={("kv", h)})
        for j in range(4):
            V("v_cvt_pk_bf16_f32 v%d, v%d, v%d" % (KVR + 8 * h + j, KVR + 8 * h + 2 * j, KVR + 8 * h + 2 * j + 1))
    def od(h, mt): return OD + 16 * mt if h % 2 == 0 else KVR + 64 - 32 + 16 * mt
    def M(h):
        for mt in range(2):
            A("v_mfma_f32_32x32x16_bf16 %s, %s, %s, 0" % (vr(OD + 16 * mt, 16), vr(KVR + 8 * h, 4), vr(qr(h, mt), 4)))
    def N(h):
        V("v_add_f32 v24, s68, v%d" % (OD + 8))
        V("v_add_f32 v25, s68, v%d" % (OD + 24))
        V("v_rcp_f32 v24, v24")
        V("v_rcp_f32 v25, v25")
        for mt in range(2):
            d = OD + 16 * mt
            for j in range(8):
                V("v_mul_f32 v%d, v%d, v%d" % (d + j, d + j, 24 + mt))
            for j in range(4):
                V("v_cvt_pk_bf16_f32 v%d, v%d, v%d" % (qr(h, mt) + j, d + 2 * j, d + 2 * j + 1))
    def R(h):
        A.wait(vm={("w", h)})
        tr_reads(h * 2048, 16, ("w", h))
    def W(h):
        for t in range(2):
            for mt in range(2):
                A.wait(lg={("w", h, t)})
                d = vr(acc2(t, mt), 16)
                A("v_mfma_f32_32x32x16_bf16 %s, %s, %s, %s" % (d, vr(16 + 4 * t, 4), vr(qr(h, mt), 4), "0" if h == 0 else d))
    NP = opt.npre
    for h in range(NP): P(h)
    A("s_movk_i32 s57, 0x%x" % min(SPIN, 0x7fff))
    A.label("L_KPOLL")
    A("buffer_load_dwordx4 v[36:39], v12, s[40:43], s63 offen sc1")
    A("s_waitcnt vmcnt(0)")
    A("v_and_b32 v36, v36, v37")
    A("v_and_b32 v38, v38, v39")
    A("v_and_b32 v36, v36, v38")
    A("v_cmp_ne_u32 vcc, 0, v36")
    A("s_cmp_eq_u64 vcc, -1")
    A("s_cbranch_scc1 L_KPOLL_OK")
    if opt.psleep: A("s_sleep %d" % opt.psleep)
    A("s_sub_u32 s57, s57, 1")
    A("s_cmp_lg_u32 s57, 0")
    A("s_cbranch_scc1 L_KPOLL")
    A.label("L_KPOLL_OK")
    A.vm = []
    stamp(A, opt, 7)
    for h in range(8):
        A("s_lshl_b32 s52, s%d, 1" % (24 + h))
        A.vmem("buffer_load_dwordx4 %s, v5, s[40:43], s52 offen sc1" % vr(KVR + 8 * h, 4), ("kv", h))
        A.vmem("buffer_load_dwordx4 %s, v5, s[40:43], s52 offen offset:16 sc1" % vr(KVR + 8 * h + 4, 4), ("kv", h))
    for h in range(NP, 8): P(h)
    C(0); M(0)
    for h in range(1, 8):
        C(h); R(h - 1); N(h - 1); M(h); W(h - 1)
    R(7); N(7); W(7)
    stamp(A, opt, 8)
    for s_ in write_partial(62, 24): A.lds(s_)
    A("s_branch L_RED")

    A.label("L_LOADER")
    A.vm = []; A.lg = []
    opt.stv = 40
    srd(A, 24, 4, 2048 * 512 * 2)
    srd(A, 36, 6, 512 * 1536 * 2)
    A("s_cmp_lt_u32 s21, 28")
    A("s_cselect_b32 s28, s8, s6")
    A("s_cselect_b32 s29, s9, s7")
    A("s_cselect_b32 s32, s10, s6")
    A("s_cselect_b32 s33, s11, s7")
    A("s_mov_b32 s56, 0x%x" % (512 * 1792 * 2))
    A("s_mov_b32 s57, 0x%x" % (512 * 1536 * 2))
    A("s_cselect_b32 s30, s56, s57")
    A("s_cselect_b32 s34, s56, s57")
    A("s_movk_i32 s56, 3584")
    A("s_movk_i32 s57, 3072")
    A("s_cselect_b32 s58, s56, s57")
    A("s_and_b32 s29, s29, 0xffff")
    A("s_and_b32 s33, s33, 0xffff")
    A("s_mov_b32 s31, 0x20000")
    A("s_mov_b32 s35, 0x20000")
    A("v_lshrrev_b32 v2, 3, v0")
    A("v_and_b32 v3, 7, v0")
    A("v_lshrrev_b32 v4, 4, v0")
    A("v_and_b32 v6, 1, v4")
    A("v_lshlrev_b32 v6, 2, v6")
    A("v_xor_b32 v6, v3, v6")
    A("v_lshlrev_b32 v6, 4, v6")
    A("v_mad_u32_u24 v12, v2, s58, v6")
    A("v_xor_b32 v5, v3, v4")
    A("v_lshlrev_b32 v5, 4, v5")
    A("v_lshl_add_u32 v10, v2, 10, v5")
    A("v_xor_b32 v11, 64, v10")
    A("v_lshrrev_b32 v2, 2, v0")
    A("v_bfe_u32 v3, v0, 1, 1")
    A("v_and_b32 v4, 1, v0")
    A("v_lshlrev_b32 v4, 4, v4")
    A("v_lshl_add_u32 v4, v3, 10, v4")
    A("v_add_u32 v4, 1024, v4")
    A("s_movk_i32 s52, 3072")
    A("v_mad_u32_u24 v13, v2, s52, v4")
    A("s_lshl_b32 s60, s20, 18")
    A("s_lshl_b32 s52, s22, 16")
    A("s_add_u32 s60, s60, s52")
    A("s_lshl_b32 s52, s21, 7")
    A("s_sub_u32 s53, s21, 28")
    A("s_lshl_b32 s53, s53, 8")
    A("s_add_u32 s54, s53, 128")
    A("s_cmp_lt_u32 s21, 28")
    A("s_cselect_b32 s61, s52, s53")
    A("s_cselect_b32 s62, s52, s54")
    A("s_lshl_b32 s52, s22, 4")
    A("s_mul_i32 s53, s52, s58")
    A("s_add_u32 s61, s61, s53")
    A("s_add_u32 s62, s62, s53")
    A("s_mul_i32 s63, s52, 3072")
    A("s_lshl_b32 s53, s21, 5")
    A("s_add_u32 s63, s63, s53")
    A("s_lshl_b32 s64, s58, 3")
    A("s_lshl_b32 s65, s58, 6")
    A("s_mul_i32 s66, s22, 24576")
    A("s_lshl_b32 s67, s22, 11")
    A("s_add_u32 s67, s67, 0x%x" % WB)
    A("s_lshl_b32 s68, s22, 10")
    A("s_add_u32 s68, s68, 0x%x" % (WB + 16384))
    WIN = opt.k1win
    if WIN == 8:
        A("s_lshl1_add_u32 s72, s20, s21")
    else:
        A("s_add_u32 s72, s20, s21")

    def stage_ops(s):
        slot = s % 3
        tag = ("st", s)
        ops = []
        def pre():
            A("s_add_u32 s76, s72, %d" % s)
            A("s_and_b32 s76, s76, %d" % (WIN - 1))
            if s & ~(WIN - 1): A("s_add_u32 s76, s76, %d" % (s & ~(WIN - 1)))
            A("s_mul_i32 s74, s76, s65")
            A("s_lshl_b32 s73, s76, 7")
            A("s_add_u32 s73, s73, s60")
            A("s_mul_i32 s75, s76, %d" % (64 * 3072))
            A("s_add_u32 s75, s75, s63")
        def xload(a):
            def f():
                A("s_add_u32 m0, s66, %d" % (slot * 8192 + a * 1024))
                A("s_add_u32 s52, s73, %d" % (a * 8192))
                A.vmem("buffer_load_dwordx4 v%d, s[24:27], s52 offen lds" % (10 + (a & 1)), tag)
            return f
        def wload(sreg, srdn, ldsoff, half, first):
            def f():
                if first: pre()
                A("s_add_u32 m0, s67, %d" % (slot * 20480 + ldsoff + 1024 * half))
                A("s_add_u32 s52, s%d, s74" % sreg)
                if half: A("s_add_u32 s52, s52, s64")
                A.vmem("buffer_load_dwordx4 v12, s[%d:%d], s52 offen lds" % (srdn, srdn + 3), tag)
            return f
        def kvload():
            A("s_add_u32 m0, s68, %d" % (slot * 20480))
            A.vmem("buffer_load_dwordx4 v13, s[36:39], s75 offen lds", tag)
        ops += [wload(61, 28, 0, 0, True), wload(61, 28, 0, 1, False), wload(62, 32, 8192, 0, False), wload(62, 32, 8192, 1, False), kvload]
        ops += [xload(a) for a in range(8)]
        return ops
    def issue_stage(s):
        for f in stage_ops(s): f()

    stamp(A, opt, 16)
    issue_stage(0)
    srd(A, 44, 16, 256)
    srd(A, 48, 14, 1024)
    srd(A, 88, 12, 1792 * 512 * 2)
    srd(A, 92, 84, 2048 * 512 * 2)
    A("v_lshlrev_b32 v14, 4, v0")
    A("s_lshl_b32 s70, s21, 11")
    A("s_add_u32 s70, s70, 0x%x" % KVT_OFF)
    A("s_or_b32 s71, s20, s22")
    A("v_mov_b32 v32, 0"); A("v_mov_b32 v33, 0"); A("v_mov_b32 v34, 0"); A("v_mov_b32 v35, 0")
    A("s_cmp_lg_u32 s71, 0")
    A("s_cbranch_scc1 L_NOZERO")
    A("buffer_store_dwordx4 v[32:35], v14, s[40:43], s70 offen sc0 sc1")
    A("buffer_store_dwordx4 v[32:35], v14, s[40:43], s70 offen offset:1024 sc0 sc1")
    A("s_nop 1")
    A.label("L_NOZERO")
    CUTS = [int(x) for x in opt.cuts.split(",")]
    pend = stage_ops(1)
    for f in pend[:CUTS[0]]: f()
    pend = pend[CUTS[0]:]
    def p2_prefetch():
        n0 = len(A.vm)
        A("s_cmp_eq_u32 s22, 1"); A("s_cbranch_scc1 L_P2_1")
        A("s_cmp_eq_u32 s22, 2"); A("s_cbranch_scc1 L_P2_2")
        A("s_cmp_eq_u32 s22, 3"); A("s_cbranch_scc1 L_P2_3")
        pf_x(2, 39, 2); A("s_branch L_P2_D")
        A.label("L_P2_1"); pf_w(0, 4, 39, 2); A("s_branch L_P2_D")
        A.label("L_P2_2"); pf_w(1, 4, 39, 2); A("s_branch L_P2_D")
        A.label("L_P2_3"); pf_x(4, 39, 2); pf_x(6, 39, 2)
        A.label("L_P2_D")
        if opt.touch:
            A("v_lshlrev_b32 v2, 7, v0")
            A("s_mul_i32 s52, s2, %d" % (56 * 128))
            A("s_mul_i32 s53, s22, %d" % (14 * 128))
            A("s_add_u32 s52, s52, s53")
            A("v_min_u32 v2, 0x680, v2")
            A.vmem("buffer_load_dword v39, v2, s[88:91], s52 offen", "pf")
        A.vm = A.vm[:n0 + 1]
    if opt.cpf == 2: p2_prefetch()

    def gate_loads():
        A("v_lshrrev_b32 v2, 5, v0")
        A("v_and_b32 v3, 31, v0")
        A("v_lshlrev_b32 v3, 5, v3")
        A("v_lshl_add_u32 v4, v2, 10, v3")
        A("s_lshl_b32 s69, s20, 8")
        A("s_lshl_b32 s52, s21, 3")
        A("s_add_u32 s69, s69, s52")
        A("s_lshl_b32 s52, s22, 1")
        A("s_add_u32 s69, s69, s52")
        A("s_lshl_b32 s52, s69, 10")
        A.vmem("buffer_load_dwordx4 v[16:19], v4, s[24:27], s52 offen", "g")
        A.vmem("buffer_load_dwordx4 v[20:23], v4, s[24:27], s52 offen offset:16", "g")
        A.vmem("buffer_load_dwordx4 v[24:27], v3, s[48:51], 0 offen", "g")
        A.vmem("buffer_load_dwordx4 v[28:31], v3, s[48:51], 0 offen offset:16", "g")
    def gate_compute():
        A.wait(vm={"g"})
        accv = 38
        first = True
        for i in range(8):
            xr_, wr_ = 16 + i, 24 + i
            A("v_lshlrev_b32 v32, 16, v%d" % xr_)
            A("v_and_b32 v33, 0xffff0000, v%d" % xr_)
            A("v_lshlrev_b32 v34, 16, v%d" % wr_)
            A("v_and_b32 v35, 0xffff0000, v%d" % wr_)
            A("v_mul_f32 v32, v32, v34")
            A("v_mul_f32 v33, v33, v35")
            A("v_cvt_pk_bf16_f32 v32, v32, v33")
            A("v_and_b32 v33, 0xffff0000, v32")
            A("v_lshlrev_b32 v32, 16, v32")
            if first:
                A("v_add_f32 v%d, v32, v33" % accv); first = False
            else:
                A("v_add_f32 v%d, v%d, v32" % (accv, accv))
                A("v_add_f32 v%d, v%d, v33" % (accv, accv))
        for off in (0x041F, 0x081F, 0x101F, 0x201F, 0x401F):
            A("ds_swizzle_b32 v32, v%d offset:0x%x" % (accv, off))
            A("s_waitcnt lgkmcnt(0)")
            A("v_add_f32 v%d, v%d, v32" % (accv, accv))
        A("v_cvt_pk_bf16_f32 v32, v%d, v%d" % (accv, accv))
        A("v_lshlrev_b32 v32, 16, v32")
        A("v_mul_f32 v32, 0xbfb8aa3b, v32")
        A("v_exp_f32 v32, v32")
        A("v_add_f32 v32, 1.0, v32")
        A("v_rcp_f32 v32, v32")
        A("v_cvt_pk_bf16_f32 v32, v32, v32")
        A("v_lshlrev_b32 v32, 16, v32")
        A("v_sub_f32 v33, 1.0, v32")
        A("v_cvt_pk_bf16_f32 v33, v33, v33")
        A("v_lshlrev_b32 v33, 16, v33")
        A("v_lshrrev_b32 v2, 5, v0")
        A("v_lshlrev_b32 v2, 3, v2")
        A("s_lshl_b32 s52, s69, 3")
        A("s_add_u32 s52, s52, 0x%x" % G_OFF)
        A.vmem("buffer_store_dwordx2 v[32:33], v2, s[40:43], s52 offen sc1", "gst")

    WDR = 16; HR = 144; NH = 6
    def wdreg(i): return WDR + 8 * (i % 16)
    def hreg(i, mt): return HR + (i % NH) * 8 + 4 * mt
    GRP = [2, 0, 2, 1, 0, 2, 1]
    def wslot(i): return GRP[i // 4] * 8192 + (i % 4) * 2048
    def p2_setup():
        w2_voffs()
        tr_addrs(66)
        A("s_and_b32 s54, s77, 3")
        A("s_mul_i32 s56, s54, 7")
        A("s_mul_i32 s57, s78, 7")
        A("s_lshr_b32 s57, s57, 1")
        A("s_add_u32 s56, s56, s57")
        A("s_sub_u32 s57, s56, 28")
        A("s_cmp_ge_u32 s56, 28")
        A("s_cselect_b32 s56, s57, s56")
        A("s_lshl_b32 s79, s56, 10")
        A("s_mov_b32 s80, s79")
        A("s_mul_i32 s81, s22, %d" % (28 * 16384))
    def wd_issue(grp):
        for i in range(4 * grp, 4 * grp + 4):
            A("s_add_u32 m0, s66, %d" % wslot(i))
            A("s_lshl4_add_u32 s52, s79, s81")
            A.vmem("buffer_load_dwordx4 v6, s[88:91], s52 offen lds", ("wd", i))
            A.vmem("buffer_load_dwordx4 v7, s[88:91], s52 offen offset:1024 lds", ("wd", i))
            A("s_add_u32 s79, s79, 1024")
            A("s_cmp_eq_u32 s79, 28672")
            A("s_cselect_b32 s79, 0, s79")
    def wd_pull(grp):
        for i in range(4 * grp, 4 * grp + 4):
            A.wait(vm={("wd", i)})
            tr_reads(wslot(i), wdreg(i), ("wd", i))
        A.wait(lg='all')
    def sched(k):
        for a in opt.sched.split("/")[k].split():
            (wd_issue if a[0] == "i" else wd_pull)(int(a[1]))
    def prefetch(part):
        if opt.pf == 0: return
        if opt.pf == 1:
            if part == 0:
                A("v_lshlrev_b32 v2, 7, v0")
                A("s_mul_i32 s52, s2, %d" % (56 * 128))
                A("s_lshl_b32 s53, s22, 11")
                A("s_add_u32 s52, s52, s53")
                A("v_and_b32 v2, 0x780, v2")
                A.vmem("buffer_load_dword v39, v2, s[88:91], s52 offen %s" % opt.pfpol, "pf")
        else:
            if part == 0:
                A("v_lshlrev_b32 v2, 7, v0")
                A("s_lshr_b32 s52, s2, 3")
                A("s_lshl2_add_u32 s52, s52, s22")
                A("s_mul_i32 s53, s52, %d" % (112 * 128))
                A.vmem("buffer_load_dword v39, v2, s[88:91], s53 offen %s" % opt.pfpol, "pf")
            elif part == 1:
                A("v_lshlrev_b32 v2, 7, v0")
                A("s_lshr_b32 s52, s2, 3")
                A("s_lshl2_add_u32 s52, s52, s22")
                A("s_mul_i32 s53, s52, %d" % (112 * 128))
                A("s_add_u32 s53, s53, %d" % (48 * 128))
                A.vmem("buffer_load_dword v39, v2, s[88:91], s53 offen %s" % opt.pfpol, "pf")
            elif part == 2:
                A("v_lshlrev_b32 v2, 7, v0")
                A("s_lshr_b32 s52, s2, 3")
                A("s_lshl2_add_u32 s52, s52, s22")
                srd(A, 8, 86, 512 * 512 * 2)
                A("v_and_b32 v2, 0xf80, v2")
                A("s_lshl_b32 s53, s52, 12")
                A.vmem("buffer_load_dword v39, v2, s[8:11], s53 offen %s" % opt.pfpol, "pf")

    for s in range(8):
        A.wait(vm={("st", s)})
        stamp(A, opt, 17 + s)
        A("s_barrier")
        for f in pend: f()
        pend = []
        if s == 0 and opt.cpf == 1: p2_prefetch()
        if s == opt.gst:
            gate_loads()
        if s + 2 <= 7:
            pend = stage_ops(s + 2)
            for f in pend[:CUTS[s + 1]]: f()
            pend = pend[CUTS[s + 1]:]
        if s == 1:
            A("s_cmp_lg_u32 s71, 0")
            A("s_cbranch_scc1 L_NOFLAG")
            A("v_mov_b32 v37, 1")
            A("s_lshl_b32 s52, s21, 2")
            A("buffer_store_dword v37, off, s[44:47], s52 sc0 sc1")
            A.label("L_NOFLAG")
        if s >= opt.pfs: prefetch(s - opt.pfs)
        if s == opt.gst + 1:
            gate_compute()
        if s == 5:
            p2_setup()
            opt.stv = 188
        if s == 5:
            hflag_addr()
            A.vmem("buffer_load_dword v190, v3, s[44:47], 0 offen sc0 sc1", "dflag")
        if s == 6: sched(0)
        if s == 7: sched(1)
    stamp(A, opt, 30)
    A("s_barrier")
    sched(2)
    T = HR
    A("s_lshl_b32 s52, s22, 6")
    A("v_add_u32 v%d, s52, v0" % T)
    A("v_lshrrev_b32 v%d, 4, v%d" % (T + 1, T))
    A("v_and_b32 v4, 3, v%d" % T)
    A("v_bfe_u32 v5, v%d, 2, 1" % T)
    A("v_lshl_add_u32 v4, v5, 3, v4")
    A("v_bfe_u32 v5, v%d, 3, 1" % T)
    A("v_lshl_add_u32 v4, v5, 2, v4")
    A("v_lshlrev_b32 v4, 2, v4")
    A("v_lshl_add_u32 v5, v%d, 7, v4" % (T + 1))
    A("v_add_u32 v5, 0x%x, v5" % PB)
    A("v_add_u32 v4, 0x%x, v4" % (PB + 16 * 128))
    A("v_lshlrev_b32 v%d, 2, v%d" % (T + 1, T))
    A.wait(vm={"dflag"})
    A("s_movk_i32 s57, 0x%x" % min(SPIN, 0x7fff))
    A.label("L_DPOLL")
    A("v_cmp_ne_u32 vcc, 0, v190")
    A("s_cmp_eq_u32 vcc_lo, -1")
    A("s_cbranch_scc1 L_DPOLL_OK")
    A("s_sleep 1")
    A("buffer_load_dword v190, v3, s[44:47], 0 offen sc0 sc1")
    A("s_waitcnt vmcnt(0)")
    A("s_sub_u32 s57, s57, 1")
    A("s_cmp_lg_u32 s57, 0")
    A("s_cbranch_scc1 L_DPOLL")
    A.label("L_DPOLL_OK")
    stamp(A, opt, 31)
    A("s_barrier")
    for w in range(4):
        A("ds_read_b32 v%d, v5 offset:%d" % (T + 2 + w, w * 4096))
    for w in range(4):
        A("ds_read_b32 v%d, v4 offset:%d" % (T + 6 + w, w * 4096))
    A("s_waitcnt lgkmcnt(0)")
    A("s_barrier")
    A("v_add_f32 v%d, v%d, v%d" % (T + 2, T + 2, T + 3)); A("v_add_f32 v%d, v%d, v%d" % (T + 4, T + 4, T + 5))
    A("v_add_f32 v%d, v%d, v%d" % (T + 6, T + 6, T + 7)); A("v_add_f32 v%d, v%d, v%d" % (T + 8, T + 8, T + 9))
    A("v_add_f32 v%d, v%d, v%d" % (T + 2, T + 2, T + 4)); A("v_add_f32 v%d, v%d, v%d" % (T + 6, T + 6, T + 8))
    A("s_cmp_lg_u32 s22, 0")
    A("s_cbranch_scc1 L_NOZ")
    A("s_mov_b64 exec, 0xffff")
    A("buffer_atomic_add_f32 v%d, v%d, s[40:43], s70 offen offset:1024" % (T + 6, T + 1))
    A("s_mov_b64 exec, -1")
    A.label("L_NOZ")
    A.vmem("buffer_atomic_add_f32 v%d, v%d, s[40:43], s70 offen" % (T + 2, T + 1), "atom")
    stamp(A, opt, 25)
    sched(3)
    A("s_mul_i32 s52, s77, %d" % (2 * 114688))
    A("s_mul_i32 s53, s22, 28672")
    A("s_add_u32 s52, s52, s53")
    A("v_add_u32 v1, s52, v14")
    A("v_add_u32 v2, 114688, v1")
    A("s_mul_i32 s52, s22, 7")
    A("s_lshl_b32 s60, 0x7f, s52")
    A("s_and_b32 s53, s77, 3")
    A("s_lshl3_add_u32 s53, s53, s23")
    A("s_lshl_b32 s53, 1, s53")
    A("s_or_b32 s60, s60, s53")
    A("s_lshl2_add_u32 s52, s20, s22")
    A("s_lshl2_add_u32 s52, s52, s70")
    A("v_mov_b32 v5, 1")
    A.wait(vm={"atom"})
    A.vmem("buffer_store_dword v5, off, s[40:43], s52 offset:%d sc1" % KVF)
    stamp(A, opt, 26)
    sched(4)
    poll_h("L_FPOLL", 60)
    opt.stv = 12
    stamp(A, opt, 27)
    def h_loads(i):
        A.vmem("buffer_load_dwordx4 %s, v1, s[40:43], s80 offen sc1" % vr(hreg(i, 0), 4), ("h", i))
        A.vmem("buffer_load_dwordx4 %s, v2, s[40:43], s80 offen sc1" % vr(hreg(i, 1), 4), ("h", i))
        A("s_add_u32 s80, s80, 1024")
        A("s_cmp_eq_u32 s80, 28672")
        A("s_cselect_b32 s80, 0, s80")
    for i in range(NH): h_loads(i)
    g_load(10)
    NI = 28
    for i in range(NI):
        A.wait(vm={("h", i)})
        for t in range(2):
            for mt in range(2):
                A.wait(lg={("wd", i, t)})
                d = vr(acc2(t, mt), 16)
                A("v_mfma_f32_32x32x16_bf16 %s, %s, %s, %s" % (d, vr(wdreg(i) + 4 * t, 4), vr(hreg(i, mt), 4), "0" if i == 0 else d))
        if i + NH < NI: h_loads(i + NH)
        if i + 16 < NI: tr_reads(wslot(i + 16), wdreg(i + 16), ("wd", i + 16))
    stamp(A, opt, 28)
    for s_ in write_partial(66, 24): A.lds(s_)

    A.label("L_RED")
    A.vm = []
    A("v_lshrrev_b32 v16, 3, v0")
    A("v_and_b32 v17, 7, v0")
    A("v_lshlrev_b32 v18, 1, v17")
    A("v_xor_b32 v18, v18, v16")
    A("s_lshl_b32 s52, s23, 3")
    A("v_add_u32 v16, s52, v16")
    A("v_lshlrev_b32 v18, 4, v18")
    A("v_lshl_add_u32 v1, v16, 8, v18")
    A("v_xor_b32 v2, 16, v1")
    A("v_add_u32 v3, 73728, v1")
    A("v_add_u32 v4, 73728, v2")
    A("v_add_u32 v5, 147456, v1")
    A("v_add_u32 v6, 147456, v2")
    A("v_lshlrev_b32 v17, 4, v17")
    A("v_lshl_add_u32 v0, v16, 10, v17")
    A("s_lshl_b32 s66, s77, 16")
    A("s_lshl_b32 s52, s78, 7")
    A("s_add_u32 s66, s66, s52")
    A("s_waitcnt vmcnt(0) lgkmcnt(0)")
    A.lg = []
    A("s_barrier")
    opt.stv = 12
    stamp(A, opt, 29)
    R0 = 64
    plist = [(1, 0), (1, 24576), (1, 49152), (3, 0), (3, 24576), (3, 40960), (3, 57344), (5, 0)]
    for p, (areg, off) in enumerate(plist):
        for c in range(2):
            A.lds("ds_read_b128 %s, v%d offset:%d" % (vr(R0 + p * 8 + c * 4, 4), areg + c, off), ("r", p))
    for p in (1, 2, 3, 5, 6, 7):
        A.wait(lg={("r", p)})
        b = R0 + (p // 4) * 32
        for j in range(4):
            A("v_pk_add_f32 %s, %s, %s" % (vr(b + 2 * j, 2), vr(b + 2 * j, 2), vr(R0 + p * 8 + 2 * j, 2)))
        if p == 3:
            for j in range(8):
                A("v_mul_f32 v%d, v%d, v11" % (R0 + j, R0 + j))
    for j in range(8):
        A("v_fmac_f32 v%d, v%d, v10" % (R0 + j, R0 + 32 + j))
    for j in range(4):
        A("v_cvt_pk_bf16_f32 v%d, v%d, v%d" % (R0 + 8 + j, R0 + 2 * j, R0 + 2 * j + 1))
    A.vmem("buffer_store_dwordx4 %s, v0, s[92:95], s66 offen" % vr(R0 + 8, 4))
    if opt.stamps:
        A.wait(vm='all')
        stamp(A, opt, 9)
        A("v_mbcnt_lo_u32_b32 v1, -1, 0")
        A("v_mbcnt_hi_u32_b32 v1, -1, v1")
        A("v_lshlrev_b32 v1, 2, v1")
        A("s_lshl3_add_u32 s3, s2, s23")
        A("s_lshl_b32 s3, s3, 8")
        A("s_add_u32 s3, s3, 0x%x" % ST_OFF)
        A("buffer_store_dword v15, v1, s[40:43], s3 offen")
    A.label("L_END")
    A("s_endpgm")
    A.lines = hz.fix(A.lines, True)
    return A.text()

def main():
    ap = argparse.ArgumentParser()
    ap.add_argument("-o", default="out.s")
    ap.add_argument("--stamps", action="store_true")
    ap.add_argument("--k1win", type=int, default=4)
    ap.add_argument("--cuts", type=str, default="8,13,13,13,13,13,13")
    ap.add_argument("--gst", type=int, default=3)
    ap.add_argument("--touch", type=int, default=0)
    ap.add_argument("--pf", type=int, default=0)
    ap.add_argument("--pfs", type=int, default=3)
    ap.add_argument("--warm", type=int, default=0)
    ap.add_argument("--cpf", type=int, default=1)
    ap.add_argument("--sched", type=str, default="i0/i1 p0 i2/i3/p1 i4 p2 i5/p3 i6")
    ap.add_argument("--pfpol", type=str, default="")
    ap.add_argument("--psleep", type=int, default=1)
    ap.add_argument("--aprio", type=int, default=0)
    ap.add_argument("--npre", type=int, default=4)
    opt = ap.parse_args()
    out = HEADER
    out += "; @launch grid=(256,1,1) block=(512,1,1) lds=%d\n" % LDS
    out += '.amdgcn_target "amdgcn-amd-amdhsa--gfx950"\n.text\n'
    out += fused(opt)
    out += '.section .rodata,"a"\n'
    out += kd(NAME + "_kernel", 256, 102, 256)
    open(opt.o, "w").write(out)

if __name__ == "__main__":
    main()
```

```python
import sys, argparse
from gen import Asm, vr, sr, srd, kd, NAME, HEADER, LOG2E
import hz

H_OFF   = 0x0
Q_OFF   = 0x700000
KVT_OFF = 0x900000
KVF     = 1152
HF      = 1280
G_OFF   = 0x910000
ST_OFF  = 0x1000000
WS_SIZE = 0x2000000
NST = 32
WB = 98304
LDS = 163840
PB = WB + 2 * 20480
SPIN = 40000

def stamp(A, opt, idx):
    if not opt.stamps: return
    A("s_memrealtime s[96:97]")
    A("s_waitcnt lgkmcnt(0)")
    A.lg = []
    A("v_writelane_b32 v15, s96, %d" % idx)

def fused(opt):
    A = Asm()
    KN = NAME + "_kernel"
    A.raw(".globl %s\n.p2align 8\n.type %s,@function\n%s:" % (KN, KN, KN))
    A("s_cmp_ge_u32 s2, 256")
    A("s_cbranch_scc1 L_END")
    A("s_load_dwordx4 s[4:7], s[0:1], 0")
    A("s_load_dwordx4 s[8:11], s[0:1], 32")
    A("s_load_dwordx4 s[16:19], s[0:1], 72")
    A("s_load_dwordx4 s[12:15], s[0:1], 48")
    A("s_load_dwordx2 s[84:85], s[0:1], 64")
    A("s_load_dwordx2 s[86:87], s[0:1], 16")
    if opt.stamps:
        A("v_mov_b32 v15, 0")
        stamp(A, opt, 0)
    if opt.dyn:
        A("v_lshrrev_b32 v1, 6, v0")
        A("s_getreg_b32 s3, hwreg(HW_REG_XCC_ID, 0, 3)")
        A("v_readfirstlane_b32 s23, v1")
        A("v_mov_b32 v2, 0x%x" % (LDS - 16))
        A("s_cmp_lg_u32 s23, %d" % opt.dynw)
        A("s_cbranch_scc1 L_DYNW")
        A("s_waitcnt lgkmcnt(0)")
        srd(A, 44, 16, 256)
        A("s_mov_b32 s52, 8")
        A("s_mov_b64 exec, 1")
        A.label("L_DYNL")
        A("v_mov_b32 v3, 1")
        A("s_lshl_b32 s53, s3, 4")
        A("buffer_atomic_add v3, off, s[44:47], s53 offset:128 sc0")
        A("s_waitcnt vmcnt(0)")
        A("v_readfirstlane_b32 s2, v3")
        A("s_cmp_lt_u32 s2, 32")
        A("s_cbranch_scc1 L_DYNOK")
        A("s_add_u32 s3, s3, 1")
        A("s_and_b32 s3, s3, 7")
        A("s_sub_u32 s52, s52, 1")
        A("s_cmp_lg_u32 s52, 0")
        A("s_cbranch_scc1 L_DYNL")
        A("s_and_b32 s2, s2, 31")
        A.label("L_DYNOK")
        A("s_lshl3_add_u32 s2, s2, s3")
        A("v_mov_b32 v3, s2")
        A("ds_write_b32 v2, v3")
        A("s_mov_b64 exec, -1")
        A("s_waitcnt lgkmcnt(0)")
        A.label("L_DYNW")
        A("s_barrier")
        A("ds_read_b32 v3, v2")
        A("s_waitcnt lgkmcnt(0)")
        A("v_readfirstlane_b32 s2, v3")
        A("s_and_b32 s2, s2, 255")
    A("s_and_b32 s20, s2, 7")
    A("s_lshr_b32 s21, s2, 3")
    A("s_and_b32 s53, s21, 3")
    A("s_lshr_b32 s78, s21, 2")
    A("s_and_b32 s52, s20, 1")
    A("s_lshr_b32 s54, s20, 1")
    A("s_lshl2_add_u32 s77, s52, s54")
    A("s_lshl2_add_u32 s77, s77, s53")
    A("s_lshl2_add_u32 s20, s52, s53")
    A("s_lshl3_add_u32 s21, s54, s78")
    A("v_lshrrev_b32 v1, 6, v0")
    A("v_and_b32 v0, 63, v0")
    A("s_nop 0")
    A("v_readfirstlane_b32 s23, v1")
    A("s_and_b32 s22, s23, 3")
    A("s_waitcnt lgkmcnt(0)")
    srd(A, 40, 18, WS_SIZE)
    stamp(A, opt, 13)
    A("s_cmp_ge_u32 s23, 4")
    A("s_cbranch_scc1 L_LOADER")

    ACC2 = 192
    def acc2(t, mt): return ACC2 + (t * 2 + mt) * 16

    def w2_voffs():
        A("v_lshrrev_b32 v4, 3, v0")
        A("v_and_b32 v5, 7, v0")
        A("v_lshlrev_b32 v5, 4, v5")
        A("v_lshl_add_u32 v5, v4, 11, v5")
        A("s_lshl_b32 s52, s78, 7")
        A("v_add_u32 v6, s52, v5")
        A("v_xor_b32 v7, 64, v6")
    def tr_addrs(base_s):
        A("v_bfe_u32 v8, v0, 1, 1")
        A("v_bfe_u32 v4, v0, 4, 1")
        A("v_lshl_add_u32 v8, v4, 1, v8")
        A("v_bfe_u32 v4, v0, 2, 1")
        A("v_lshl_add_u32 v8, v4, 2, v8")
        A("v_lshlrev_b32 v8, 4, v8")
        A("v_lshl_add_u32 v8, v4, 10, v8")
        A("v_and_b32 v4, 1, v0")
        A("v_lshl_add_u32 v8, v4, 3, v8")
        A("v_bfe_u32 v4, v0, 3, 1")
        A("v_lshl_add_u32 v8, v4, 7, v8")
        A("v_lshrrev_b32 v4, 5, v0")
        A("v_lshl_add_u32 v8, v4, 8, v8")
        A("v_add_u32 v8, s%d, v8" % base_s)
        A("v_xor_b32 v9, 64, v8")
    def tr_reads(off, dst, tag):
        for t in range(2):
            for rd in range(2):
                A.lds("ds_read_b64_tr_b16 %s, v%d offset:%d" % (vr(dst + 4 * t + 2 * rd, 2), 8 + t, off + rd * 512), tag + (t,))
    def poll_h(lbl, mask_s):
        A("s_movk_i32 s57, 0x%x" % min(SPIN, 0x7fff))
        A.label(lbl)
        A("buffer_load_dword v4, v3, s[40:43], s83 offen sc1")
        A("s_waitcnt vmcnt(0)")
        A("v_cmp_ne_u32 vcc, 0, v4")
        A("s_and_b32 s52, vcc_lo, s%d" % mask_s)
        A("s_cmp_eq_u32 s52, s%d" % mask_s)
        A("s_cbranch_scc1 %s_OK" % lbl)
        if opt.psleep: A("s_sleep %d" % opt.psleep)
        A("s_sub_u32 s57, s57, 1")
        A("s_cmp_lg_u32 s57, 0")
        A("s_cbranch_scc1 %s" % lbl)
        A.label(lbl + "_OK")
        A.vm = []
    def hflag_addr():
        A("v_and_b32 v3, 31, v0")
        A("v_lshlrev_b32 v3, 2, v3")
        A("s_lshl_b32 s83, s77, 11")
        A("s_add_u32 s83, s83, 0x%x" % (KVT_OFF + HF))
    def g_load(dst):
        A("v_lshrrev_b32 v4, 3, v0")
        A("v_lshlrev_b32 v4, 3, v4")
        A("s_lshl_b32 s52, s77, 9")
        A("s_lshl_b32 s53, s23, 6")
        A("s_add_u32 s52, s52, s53")
        A("s_add_u32 s52, s52, 0x%x" % G_OFF)
        A.vmem("buffer_load_dwordx2 %s, v4, s[40:43], s52 offen sc1" % vr(dst, 2), "g")
    def write_partial(base_s, tmp):
        A("v_and_b32 v%d, 31, v0" % tmp)
        A("v_lshrrev_b32 v%d, 5, v0" % (tmp + 1))
        A("v_and_b32 v%d, 7, v0" % (tmp + 2))
        A("v_xor_b32 v%d, v%d, v%d" % (tmp + 1, tmp + 1, tmp + 2))
        A("v_lshlrev_b32 v%d, 4, v%d" % (tmp + 1, tmp + 1))
        A("v_lshl_add_u32 v%d, v%d, 8, v%d" % (tmp, tmp, tmp + 1))
        A("v_add_u32 v%d, s%d, v%d" % (tmp, base_s, tmp))
        for g4 in range(1, 4):
            A("v_xor_b32 v%d, %d, v%d" % (tmp + g4, g4 * 32, tmp))
        return [("ds_write_b128 v%d, %s offset:%d" % (tmp + g4, vr(acc2(t, mt) + 4 * g4, 4), mt * 8192 + t * 128))
                for t in range(2) for mt in range(2) for g4 in range(4)]

    def lohi_srd(d, which):
        A("s_cmp_lt_u32 s21, 28")
        A("s_cselect_b32 s%d, s%d, s6" % (d, 8 + 2 * which))
        A("s_cselect_b32 s%d, s%d, s7" % (d + 1, 9 + 2 * which))
        A("s_mov_b32 s56, 0x%x" % (512 * 1792 * 2))
        A("s_mov_b32 s57, 0x%x" % (512 * 1536 * 2))
        A("s_cselect_b32 s%d, s56, s57" % (d + 2))
        A("s_movk_i32 s56, 3584")
        A("s_movk_i32 s57, 3072")
        A("s_cselect_b32 s58, s56, s57")
        A("s_and_b32 s%d, s%d, 0xffff" % (d + 1, d + 1))
        A("s_mov_b32 s%d, 0x20000" % (d + 3))
    def pf_x(st0, dst, vt):
        A("v_and_b32 v%d, 31, v0" % vt)
        A("v_lshrrev_b32 v%d, 5, v0" % (vt + 1))
        A("v_lshlrev_b32 v%d, 10, v%d" % (vt, vt))
        A("v_lshl_add_u32 v%d, v%d, 7, v%d" % (vt, vt + 1, vt))
        A("s_lshl3_add_u32 s52, s20, s78")
        A("s_lshl_b32 s52, s52, 15")
        A.vmem("buffer_load_dword v%d, v%d, s[24:27], s52 offen offset:%d %s" % (dst, vt, st0 * 128, opt.pfpol), "pf")
    def pf_w(which, st0, dst, vt):
        A("v_and_b32 v%d, 15, v0" % vt)
        A("v_lshrrev_b32 v%d, 4, v0" % (vt + 1))
        A("v_lshl_add_u32 v%d, v%d, 6, v%d" % (vt, vt + 1, vt))
        A("v_mul_u32_u24 v%d, s58, v%d" % (vt, vt))
        A("s_lshl_b32 s52, s21, 7")
        A("s_sub_u32 s53, s21, 28")
        A("s_lshl_b32 s53, s53, 8")
        if which: A("s_add_u32 s53, s53, 128")
        A("s_cmp_lt_u32 s21, 28")
        A("s_cselect_b32 s52, s52, s53")
        A("s_and_b32 s53, s20, 3")
        A("s_lshl_b32 s53, s53, 4")
        A("s_add_u32 s53, s53, %d" % (st0 * 64))
        A("s_mul_i32 s53, s53, s58")
        A("s_add_u32 s52, s52, s53")
        A.vmem("buffer_load_dword v%d, v%d, s[%d:%d], s52 offen %s" % (dst, vt, 28 + 4 * which, 31 + 4 * which, opt.pfpol), "pf")
    def pf_kv(dst, vt):
        A("v_and_b32 v%d, 3, v0" % vt)
        A("v_lshrrev_b32 v%d, 3, v0" % (vt + 1))
        A("v_lshl_add_u32 v%d, v%d, 6, v%d" % (vt, vt + 1, vt))
        A("v_mul_u32_u24 v%d, 3072, v%d" % (vt, vt))
        A("v_bfe_u32 v%d, v0, 2, 1" % (vt + 1))
        A("v_lshl_add_u32 v%d, v%d, 10, v%d" % (vt, vt + 1, vt))
        A("s_and_b32 s53, s20, 3")
        A("s_and_b32 s52, s78, 3")
        A("s_lshl2_add_u32 s53, s53, s52")
        A("s_mul_i32 s53, s53, %d" % (4 * 3072))
        A("s_lshl_b32 s52, s21, 5")
        A("s_add_u32 s52, s52, s53")
        A.vmem("buffer_load_dword v%d, v%d, s[36:39], s52 offen offset:1024 %s" % (dst, vt, opt.pfpol), "pf")

    opt.stv = 72
    if opt.cpf:
        A("s_cmp_eq_u32 s22, 1"); A("s_cbranch_scc1 L_P1_1")
        A("s_cmp_eq_u32 s22, 2"); A("s_cbranch_scc1 L_P1_2")
        A("s_cmp_eq_u32 s22, 3"); A("s_cbranch_scc1 L_P1_3")
        srd(A, 24, 4, 2048 * 512 * 2); pf_x(0, 90, 91); A("s_branch L_P1_D")
        A.label("L_P1_1"); lohi_srd(28, 0); pf_w(0, 0, 90, 91); A("s_branch L_P1_D")
        A.label("L_P1_2"); lohi_srd(32, 1); pf_w(1, 0, 90, 91); A("s_branch L_P1_D")
        A.label("L_P1_3"); srd(A, 36, 6, 512 * 1536 * 2); pf_kv(90, 91)
        A.label("L_P1_D")
        A.vm = []
    A("v_and_b32 v8, 31, v0")
    A("v_lshrrev_b32 v9, 5, v0")
    A("v_bfe_u32 v10, v0, 1, 3")
    A("v_xor_b32 v10, v10, v9")
    A("v_lshlrev_b32 v10, 4, v10")
    A("v_lshl_add_u32 v10, v8, 7, v10")
    A("s_mul_i32 s52, s22, 24576")
    A("v_add_u32 v1, s52, v10")
    A("v_xor_b32 v2, 32, v1")
    A("v_xor_b32 v3, 64, v1")
    A("v_xor_b32 v4, 96, v1")
    A("v_bfe_u32 v10, v0, 2, 2")
    A("v_and_b32 v11, 3, v0")
    A("v_bfe_u32 v12, v0, 4, 1")
    A("v_lshrrev_b32 v13, 1, v11")
    A("v_lshl_add_u32 v13, v12, 1, v13")
    A("v_bfe_u32 v14, v0, 3, 1")
    A("v_lshlrev_b32 v14, 2, v14")
    A("v_xor_b32 v13, v13, v14")
    A("v_lshlrev_b32 v13, 4, v13")
    A("v_and_b32 v14, 1, v11")
    A("v_lshl_add_u32 v13, v14, 3, v13")
    A("v_lshl_add_u32 v13, v10, 7, v13")
    A("v_lshl_add_u32 v13, v9, 10, v13")
    A("v_add_u32 v5, 0x%x, v13" % WB)
    A("v_xor_b32 v6, 64, v5")
    A("v_lshlrev_b32 v13, 3, v11")
    A("v_lshl_add_u32 v13, v12, 5, v13")
    A("v_lshl_add_u32 v13, v10, 6, v13")
    A("v_lshl_add_u32 v13, v9, 9, v13")
    A("v_add_u32 v7, 0x%x, v13" % (WB + 16384))
    srd(A, 88, 86, 512 * 512 * 2)
    srd(A, 92, 84, 2048 * 512 * 2)
    A("v_lshlrev_b32 v8, 4, v0")
    A("s_lshl_b32 s54, s20, 3")
    A("s_lshl_b32 s55, s22, 1")
    A("s_add_u32 s54, s54, s55")
    A("s_mul_i32 s60, s54, 114688")
    A("s_lshl_b32 s56, s21, 12")
    A("s_add_u32 s60, s60, s56")
    A("s_add_u32 s61, s60, 114688")
    A("s_lshl_b32 s62, s54, 15")
    A("s_sub_u32 s56, s21, 28")
    A("s_lshl_b32 s56, s56, 13")
    A("s_add_u32 s62, s62, s56")
    A("s_add_u32 s62, s62, 0x%x" % Q_OFF)
    A("s_add_u32 s63, s62, 4096")
    A("s_add_u32 s64, s62, 32768")
    A("s_add_u32 s65, s64, 4096")
    A("s_lshl2_add_u32 s66, s20, s22")
    A("s_lshl_b32 s66, s66, 11")
    A("s_lshl2_add_u32 s66, s21, s66")
    A("s_add_u32 s66, s66, 0x%x" % (KVT_OFF + HF))
    A("v_and_b32 v9, 31, v0")
    A("v_lshrrev_b32 v10, 5, v0")
    A("v_lshlrev_b32 v9, 2, v9")
    A("v_lshl_add_u32 v9, v10, 9, v9")
    A("s_lshl_b32 s54, s22, 12")
    A("s_add_u32 s54, s54, 0x%x" % PB)
    A("v_add_u32 v9, s54, v9")
    A("v_mov_b32 v10, 0x3f803f80")
    A("v_mov_b32 v11, 1")
    A("s_mov_b32 s67, 0x%x" % LOG2E)
    A("s_mov_b32 s68, 0x358637bd")
    A("s_mov_b32 s69, 0xffff0000")

    if opt.touch:
        A("s_cmp_lt_u32 s21, 28")
        A("s_cselect_b32 s52, s60, s62")
        A("s_cselect_b32 s53, s61, s64")
        A("buffer_load_dword v93, off, s[40:43], s52")
        A("buffer_load_dword v94, off, s[40:43], s53")
        A("buffer_load_dword v95, off, s[40:43], s66 offset:256")
        A("s_lshl_b32 s52, s77, 16")
        A("buffer_load_dword v89, off, s[92:95], s52")
        A("v_and_b32 v88, 3, v0")
        A("v_lshlrev_b32 v88, 7, v88")
        A("s_lshl2_add_u32 s52, s2, s22")
        A("s_lshl_b32 s52, s52, 9")
        A("buffer_load_dword v88, v88, s[88:91], s52 offen")
    ACC = 96
    def acc(mt, t): return ACC + (mt * 5 + t) * 16
    FR = [16, 44]
    def xf(st, mt): return FR[st] + mt * 4
    def wf(st, t): return FR[st] + 8 + t * 4
    def reads_for(n):
        s, ks = divmod(n, 4); slot = s % 3; st = n % 2
        out = []
        def xr(mt):
            out.append(("ds_read_b128 %s, v%d offset:%d" % (vr(xf(st, mt), 4), 1 + ks, slot * 8192 + mt * 4096), ("x", n, mt)))
        def wr(t):
            for rd in range(2):
                if t < 4:
                    off = slot * 20480 + ks * 2048 + rd * 512 + (8192 if t >= 2 else 0)
                    a = 5 + (t & 1)
                else:
                    off = slot * 20480 + ks * 1024 + rd * 256
                    a = 7
                out.append(("ds_read_b64_tr_b16 %s, v%d offset:%d" % (vr(wf(st, t) + 2 * rd, 2), a, off), ("w", n, t)))
        xr(0); wr(0); xr(1); wr(1); wr(2); wr(3); wr(4)
        return out
    def mfma(n, mt, t):
        st = n % 2
        c = "0" if n == 0 else vr(acc(mt, t), 16)
        if t < 4:
            return "v_mfma_f32_32x32x16_bf16 %s, %s, %s, %s" % (vr(acc(mt, t), 16), vr(wf(st, t), 4), vr(xf(st, mt), 4), c)
        return "v_mfma_f32_32x32x16_bf16 %s, %s, %s, %s" % (vr(acc(mt, t), 16), vr(xf(st, mt), 4), vr(wf(st, t), 4), c)

    if opt.warm:
        A("s_mov_b32 s59, 1")
        A("s_branch L_KVEPI2")
        A.label("L_WARMBACK")
    A("s_mov_b32 s59, 0")
    stamp(A, opt, 11)
    A("s_barrier")
    stamp(A, opt, 1)
    for (s_, tg) in reads_for(0):
        A.lds(s_, tg)
    NK = 32
    for n in range(NK):
        s, ks = divmod(n, 4)
        nxt = reads_for(n + 1) if n + 1 < NK else []
        order = [(mt, t) for t in range(5) for mt in range(2)]
        if n == NK - 1:
            order = [(0, 0), (0, 2), (0, 1), (0, 3), (1, 0), (1, 2), (1, 1), (1, 3), (0, 4), (1, 4)]
        need_bar = (ks == 3)
        A.comment("kstep %d" % n)
        for i, (mt, t) in enumerate(order):
            if need_bar and i == 0:
                A.wait(lg='all')
            else:
                A.wait(lg={("x", n, mt), ("w", n, t)})
            A(mfma(n, mt, t))
            if need_bar and i == 0:
                A("s_barrier")
            k = 0
            while nxt and k < 2:
                s_, tg = nxt.pop(0)
                A.lds(s_, tg); k += 1
    stamp(A, opt, 2)
    A("s_cmp_ge_u32 s21, 28")
    A("s_cbranch_scc1 L_QEPI")
    for mt in range(2):
        for tp in range(2):
            g, u = acc(mt, tp), acc(mt, 2 + tp)
            p = 16 + (mt * 2 + tp) * 8
            for half in range(2):
                for i in range(4 * half, 4 * half + 4):
                    A("v_pk_mul_f32 %s, %s, %s" % (vr(g + 2 * i, 2), vr(g + 2 * i, 2), vr(u + 2 * i, 2)))
                for i in range(4 * half, 4 * half + 4):
                    A("v_cvt_pk_bf16_f32 v%d, v%d, v%d" % (p + i, g + 2 * i, g + 2 * i + 1))
                A.vmem("buffer_store_dwordx4 %s, v8, s[40:43], s%d offen offset:%d sc1" % (vr(p + 4 * half, 4), 60 + mt, (2 * tp + half) * 1024))
    A("s_branch L_KVEPI")
    A.label("L_QEPI")
    A("s_nop 7")
    for mt in range(2):
        for t in (0, 2, 1, 3):
            g = acc(mt, t)
            p = 16 + ((mt * 4 + t) % 8) * 8
            if p >= 72: p += 8
            for half in range(2):
                for i in range(4 * half, 4 * half + 4):
                    A("v_cvt_pk_bf16_f32 v%d, v%d, v%d" % (p + i, g + 2 * i, g + 2 * i + 1))
                A("buffer_store_dwordx4 %s, v8, s[40:43], s%d offen offset:%d sc1" % (vr(p + 4 * half, 4), 62 + mt * 2 + (t >> 1), ((2 * t + half) % 4) * 1024))
    A.label("L_KVEPI")
    stamp(A, opt, 3)
    A.label("L_KVEPI2")
    A("v_and_b32 v12, 16, v0")
    A("v_cmp_eq_u32 vcc, 0, v12")
    PP, AA, KD, TT = 96, 112, 128, 144
    for mt in range(2):
        a = acc(mt, 4)
        for r in range(0, 16, 2):
            t0, t1 = TT + (r % 8), TT + 1 + (r % 8)
            A("v_mul_f32 v%d, s67, v%d" % (t0, a + r))
            A("v_mul_f32 v%d, s67, v%d" % (t1, a + r + 1))
            A("v_exp_f32_e64 v%d, v%d clamp" % (t0, t0))
            A("v_exp_f32_e64 v%d, v%d clamp" % (t1, t1))
            A("v_max_f32 v12, s68, v%d" % (a + r))
            A("v_max_f32 v13, s68, v%d" % (a + r + 1))
            A("v_add_f32 v%d, v%d, v12" % (t0, t0))
            A("v_add_f32 v%d, v%d, v13" % (t1, t1))
            A("v_cndmask_b32 v%d, v%d, v%d, vcc" % (t0, a + r, t0))
            A("v_cndmask_b32 v%d, v%d, v%d, vcc" % (t1, a + r + 1, t1))
            p = PP + mt * 8 + r // 2
            A("v_cvt_pk_bf16_f32 v%d, v%d, v%d" % (p, t0, t1))
            A("v_cndmask_b32 v%d, v%d, v10, vcc" % (p + 16, p))
            if r % 8 == 6:
                i = mt * 2 + r // 8
                c = "0" if i == 0 else vr(KD, 16)
                A("v_mfma_f32_32x32x16_bf16 %s, %s, %s, %s" % (vr(KD, 16), vr(AA + 4 * i, 4), vr(PP + 4 * i, 4), c))
    if opt.warm:
        A("s_cmp_eq_u32 s59, 1")
        A("s_cbranch_scc1 L_WARMBACK")
    stamp(A, opt, 12)
    for r in range(8, 16):
        e = 8 * ((r - 8) // 4) + (r % 4)
        A.lds("ds_write_b32 v9, v%d offset:%d" % (KD + r, e * 128))
    A.lds("ds_write_b32 v9, v%d offset:%d" % (KD, 16 * 128))
    A.wait(lg='all')
    stamp(A, opt, 10)
    A("s_barrier")
    if opt.aprio: A("s_setprio %d" % opt.aprio)
    A("s_and_b32 s53, s77, 3")
    A("s_lshl1_add_u32 s56, s53, s78")
    for h in range(8):
        A("s_add_u32 s57, s56, %d" % h)
        A("s_and_b32 s57, s57, 7")
        A("s_lshl_b32 s%d, s57, 10" % (24 + h))
    w2_voffs()
    A("s_lshl_b32 s62, s22, 14")
    A("s_add_u32 s62, s62, 0x%x" % WB)
    A("s_lshl_b32 s64, s22, 17")
    A("s_barrier")
    stamp(A, opt, 4)
    A("s_waitcnt vmcnt(0)")
    A.vm = []
    A.vmem("buffer_store_dword v11, off, s[40:43], s66 sc1")
    stamp(A, opt, 5)
    def wo_loads(h):
        A("s_add_u32 m0, s62, %d" % (h * 2048))
        A("s_lshl4_add_u32 s52, s%d, s64" % (24 + h))
        A.vmem("buffer_load_dwordx4 v6, s[88:91], s52 offen lds", ("w", h))
        A.vmem("buffer_load_dwordx4 v7, s[88:91], s52 offen offset:1024 lds", ("w", h))
    for h in range(8): wo_loads(h)
    opt.stv = 30
    A("s_lshl_b32 s52, s77, 16")
    A("s_lshl_b32 s53, s22, 13")
    A("s_add_u32 s52, s52, s53")
    A("s_add_u32 s52, s52, 0x%x" % Q_OFF)
    A("v_add_u32 v1, s52, v8")
    A("v_add_u32 v2, 0x8000, v1")
    tr_addrs(62)
    hflag_addr()
    A("v_and_b32 v14, 31, v0")
    A("v_lshrrev_b32 v13, 5, v0")
    A("v_min_u32 v5, 16, v14")
    A("v_lshlrev_b32 v5, 6, v5")
    A("v_lshl_add_u32 v5, v13, 5, v5")
    A("s_lshl_b32 s52, s22, 14")
    A("s_add_u32 s52, s52, 0x%x" % KVT_OFF)
    A("v_add_u32 v5, s52, v5")
    A("v_lshrrev_b32 v12, 3, v0")
    A("v_and_b32 v13, 7, v0")
    A("v_lshlrev_b32 v13, 4, v13")
    A("v_lshl_add_u32 v12, v12, 11, v13")
    A("s_add_u32 s63, s52, %d" % KVF)
    A("s_add_u32 s52, s22, 28")
    A("s_lshl_b32 s60, 1, s52")
    A("s_and_b32 s53, s77, 3")
    A("s_lshl3_add_u32 s53, s53, s23")
    A("s_lshl_b32 s53, 1, s53")
    A("s_or_b32 s60, s60, s53")
    poll_h("L_APOLL", 60)
    stamp(A, opt, 6)
    QR = 64; KVR = 128; OD = 32
    def qr(h, mt): return QR + 8 * h + 4 * mt
    for h in range(8):
        A.vmem("buffer_load_dwordx4 %s, v1, s[40:43], s%d offen sc1" % (vr(qr(h, 0), 4), 24 + h), ("q", h, 0))
        A.vmem("buffer_load_dwordx4 %s, v2, s[40:43], s%d offen sc1" % (vr(qr(h, 1), 4), 24 + h), ("q", h, 1))
    g_load(10)
    V = A
    def P(h):
        for mt in range(2):
            A.wait(vm={("q", h, mt)})
            q = qr(h, mt)
            for j in range(0, 4, 2):
                for jj in range(2):
                    t = 24 + 2 * jj
                    V("v_lshlrev_b32 v%d, 16, v%d" % (t, q + j + jj))
                    V("v_and_b32 v%d, s69, v%d" % (t + 1, q + j + jj))
                for x in range(4):
                    V("v_mul_f32 v%d, s67, v%d" % (32 + x, 24 + x))
                for x in range(4):
                    V("v_exp_f32_e64 v%d, v%d clamp" % (32 + x, 32 + x))
                    V("v_max_f32 v%d, s68, v%d" % (24 + x, 24 + x))
                for x in range(4):
                    V("v_add_f32 v%d, v%d, v%d" % (24 + x, 24 + x, 32 + x))
                for jj in range(2):
                    t = 24 + 2 * jj
                    V("v_cvt_pk_bf16_f32 v%d, v%d, v%d" % (q + j + jj, t, t + 1))
    def C(h):
        A.wait(vm={("kv", h)})
        for j in range(4):
            V("v_cvt_pk_bf16_f32 v%d, v%d, v%d" % (KVR + 8 * h + j, KVR + 8 * h + 2 * j, KVR + 8 * h + 2 * j + 1))
    def od(h, mt): return OD + 16 * mt if h % 2 == 0 else KVR + 64 - 32 + 16 * mt
    def M(h):
        for mt in range(2):
            A("v_mfma_f32_32x32x16_bf16 %s, %s, %s, 0" % (vr(OD + 16 * mt, 16), vr(KVR + 8 * h, 4), vr(qr(h, mt), 4)))
    def N(h):
        V("v_add_f32 v24, s68, v%d" % (OD + 8))
        V("v_add_f32 v25, s68, v%d" % (OD + 24))
        V("v_rcp_f32 v24, v24")
        V("v_rcp_f32 v25, v25")
        for mt in range(2):
            d = OD + 16 * mt
            for j in range(8):
                V("v_mul_f32 v%d, v%d, v%d" % (d + j, d + j, 24 + mt))
            for j in range(4):
                V("v_cvt_pk_bf16_f32 v%d, v%d, v%d" % (qr(h, mt) + j, d + 2 * j, d + 2 * j + 1))
    def R(h):
        A.wait(vm={("w", h)})
        tr_reads(h * 2048, 16, ("w", h))
    def W(h):
        for t in range(2):
            for mt in range(2):
                A.wait(lg={("w", h, t)})
                d = vr(acc2(t, mt), 16)
                A("v_mfma_f32_32x32x16_bf16 %s, %s, %s, %s" % (d, vr(16 + 4 * t, 4), vr(qr(h, mt), 4), "0" if h == 0 else d))
    NP = opt.npre
    for h in range(NP): P(h)
    A("s_movk_i32 s57, 0x%x" % min(SPIN, 0x7fff))
    A.label("L_KPOLL")
    A("buffer_load_dwordx4 v[36:39], v12, s[40:43], s63 offen sc1")
    A("s_waitcnt vmcnt(0)")
    A("v_and_b32 v36, v36, v37")
    A("v_and_b32 v38, v38, v39")
    A("v_and_b32 v36, v36, v38")
    A("v_cmp_ne_u32 vcc, 0, v36")
    A("s_cmp_eq_u64 vcc, -1")
    A("s_cbranch_scc1 L_KPOLL_OK")
    if opt.psleep: A("s_sleep %d" % opt.psleep)
    A("s_sub_u32 s57, s57, 1")
    A("s_cmp_lg_u32 s57, 0")
    A("s_cbranch_scc1 L_KPOLL")
    A.label("L_KPOLL_OK")
    A.vm = []
    stamp(A, opt, 7)
    for h in range(8):
        A("s_lshl_b32 s52, s%d, 1" % (24 + h))
        A.vmem("buffer_load_dwordx4 %s, v5, s[40:43], s52 offen sc1" % vr(KVR + 8 * h, 4), ("kv", h))
        A.vmem("buffer_load_dwordx4 %s, v5, s[40:43], s52 offen offset:16 sc1" % vr(KVR + 8 * h + 4, 4), ("kv", h))
    for h in range(NP, 8): P(h)
    C(0); M(0)
    for h in range(1, 8):
        C(h); R(h - 1); N(h - 1); M(h); W(h - 1)
    R(7); N(7); W(7)
    stamp(A, opt, 8)
    for s_ in write_partial(62, 24): A.lds(s_)
    A("s_branch L_RED")

    A.label("L_LOADER")
    A.vm = []; A.lg = []
    opt.stv = 40
    srd(A, 24, 4, 2048 * 512 * 2)
    srd(A, 36, 6, 512 * 1536 * 2)
    A("s_cmp_lt_u32 s21, 28")
    A("s_cselect_b32 s28, s8, s6")
    A("s_cselect_b32 s29, s9, s7")
    A("s_cselect_b32 s32, s10, s6")
    A("s_cselect_b32 s33, s11, s7")
    A("s_mov_b32 s56, 0x%x" % (512 * 1792 * 2))
    A("s_mov_b32 s57, 0x%x" % (512 * 1536 * 2))
    A("s_cselect_b32 s30, s56, s57")
    A("s_cselect_b32 s34, s56, s57")
    A("s_movk_i32 s56, 3584")
    A("s_movk_i32 s57, 3072")
    A("s_cselect_b32 s58, s56, s57")
    A("s_and_b32 s29, s29, 0xffff")
    A("s_and_b32 s33, s33, 0xffff")
    A("s_mov_b32 s31, 0x20000")
    A("s_mov_b32 s35, 0x20000")
    A("v_lshrrev_b32 v2, 3, v0")
    A("v_and_b32 v3, 7, v0")
    A("v_lshrrev_b32 v4, 4, v0")
    A("v_and_b32 v6, 1, v4")
    A("v_lshlrev_b32 v6, 2, v6")
    A("v_xor_b32 v6, v3, v6")
    A("v_lshlrev_b32 v6, 4, v6")
    A("v_mad_u32_u24 v12, v2, s58, v6")
    A("v_xor_b32 v5, v3, v4")
    A("v_lshlrev_b32 v5, 4, v5")
    A("v_lshl_add_u32 v10, v2, 10, v5")
    A("v_xor_b32 v11, 64, v10")
    A("v_lshrrev_b32 v2, 2, v0")
    A("v_bfe_u32 v3, v0, 1, 1")
    A("v_and_b32 v4, 1, v0")
    A("v_lshlrev_b32 v4, 4, v4")
    A("v_lshl_add_u32 v4, v3, 10, v4")
    A("v_add_u32 v4, 1024, v4")
    A("s_movk_i32 s52, 3072")
    A("v_mad_u32_u24 v13, v2, s52, v4")
    A("s_lshl_b32 s60, s20, 18")
    A("s_lshl_b32 s52, s22, 16")
    A("s_add_u32 s60, s60, s52")
    A("s_lshl_b32 s52, s21, 7")
    A("s_sub_u32 s53, s21, 28")
    A("s_lshl_b32 s53, s53, 8")
    A("s_add_u32 s54, s53, 128")
    A("s_cmp_lt_u32 s21, 28")
    A("s_cselect_b32 s61, s52, s53")
    A("s_cselect_b32 s62, s52, s54")
    A("s_lshl_b32 s52, s22, 4")
    A("s_mul_i32 s53, s52, s58")
    A("s_add_u32 s61, s61, s53")
    A("s_add_u32 s62, s62, s53")
    A("s_mul_i32 s63, s52, 3072")
    A("s_lshl_b32 s53, s21, 5")
    A("s_add_u32 s63, s63, s53")
    A("s_lshl_b32 s64, s58, 3")
    A("s_lshl_b32 s65, s58, 6")
    A("s_mul_i32 s66, s22, 24576")
    A("s_lshl_b32 s67, s22, 11")
    A("s_add_u32 s67, s67, 0x%x" % WB)
    A("s_lshl_b32 s68, s22, 10")
    A("s_add_u32 s68, s68, 0x%x" % (WB + 16384))
    WIN = opt.k1win
    if WIN == 8:
        A("s_lshl1_add_u32 s72, s20, s21")
    else:
        A("s_add_u32 s72, s20, s21")

    def stage_ops(s):
        slot = s % 3
        tag = ("st", s)
        ops = []
        def pre():
            A("s_add_u32 s76, s72, %d" % s)
            A("s_and_b32 s76, s76, %d" % (WIN - 1))
            if s & ~(WIN - 1): A("s_add_u32 s76, s76, %d" % (s & ~(WIN - 1)))
            A("s_mul_i32 s74, s76, s65")
            A("s_lshl_b32 s73, s76, 7")
            A("s_add_u32 s73, s73, s60")
            A("s_mul_i32 s75, s76, %d" % (64 * 3072))
            A("s_add_u32 s75, s75, s63")
        def xload(a):
            def f():
                A("s_add_u32 m0, s66, %d" % (slot * 8192 + a * 1024))
                A("s_add_u32 s52, s73, %d" % (a * 8192))
                A.vmem("buffer_load_dwordx4 v%d, s[24:27], s52 offen lds" % (10 + (a & 1)), tag)
            return f
        def wload(sreg, srdn, ldsoff, half, first):
            def f():
                if first: pre()
                A("s_add_u32 m0, s67, %d" % (slot * 20480 + ldsoff + 1024 * half))
                A("s_add_u32 s52, s%d, s74" % sreg)
                if half: A("s_add_u32 s52, s52, s64")
                A.vmem("buffer_load_dwordx4 v12, s[%d:%d], s52 offen lds" % (srdn, srdn + 3), tag)
            return f
        def kvload():
            A("s_add_u32 m0, s68, %d" % (slot * 20480))
            A.vmem("buffer_load_dwordx4 v13, s[36:39], s75 offen lds", tag)
        ops += [wload(61, 28, 0, 0, True), wload(61, 28, 0, 1, False), wload(62, 32, 8192, 0, False), wload(62, 32, 8192, 1, False), kvload]
        ops += [xload(a) for a in range(8)]
        return ops
    def issue_stage(s):
        for f in stage_ops(s): f()

    stamp(A, opt, 16)
    issue_stage(0)
    srd(A, 44, 16, 256)
    srd(A, 48, 14, 1024)
    srd(A, 88, 12, 1792 * 512 * 2)
    srd(A, 92, 84, 2048 * 512 * 2)
    A("v_lshlrev_b32 v14, 4, v0")
    A("s_lshl_b32 s70, s21, 11")
    A("s_add_u32 s70, s70, 0x%x" % KVT_OFF)
    A("s_or_b32 s71, s20, s22")
    A("v_mov_b32 v32, 0"); A("v_mov_b32 v33, 0"); A("v_mov_b32 v34, 0"); A("v_mov_b32 v35, 0")
    A("s_cmp_lg_u32 s71, 0")
    A("s_cbranch_scc1 L_NOZERO")
    A("buffer_store_dwordx4 v[32:35], v14, s[40:43], s70 offen sc0 sc1")
    A("buffer_store_dwordx4 v[32:35], v14, s[40:43], s70 offen offset:1024 sc0 sc1")
    A("s_nop 1")
    A.label("L_NOZERO")
    CUTS = [int(x) for x in opt.cuts.split(",")]
    pend = stage_ops(1)
    for f in pend[:CUTS[0]]: f()
    pend = pend[CUTS[0]:]
    def p2_prefetch():
        n0 = len(A.vm)
        A("s_cmp_eq_u32 s22, 1"); A("s_cbranch_scc1 L_P2_1")
        A("s_cmp_eq_u32 s22, 2"); A("s_cbranch_scc1 L_P2_2")
        A("s_cmp_eq_u32 s22, 3"); A("s_cbranch_scc1 L_P2_3")
        pf_x(2, 39, 2); A("s_branch L_P2_D")
        A.label("L_P2_1"); pf_w(0, 4, 39, 2); A("s_branch L_P2_D")
        A.label("L_P2_2"); pf_w(1, 4, 39, 2); A("s_branch L_P2_D")
        A.label("L_P2_3"); pf_x(4, 39, 2); pf_x(6, 39, 2)
        A.label("L_P2_D")
        if opt.touch:
            A("v_lshlrev_b32 v2, 7, v0")
            A("s_mul_i32 s52, s2, %d" % (56 * 128))
            A("s_mul_i32 s53, s22, %d" % (14 * 128))
            A("s_add_u32 s52, s52, s53")
            A("v_min_u32 v2, 0x680, v2")
            A.vmem("buffer_load_dword v39, v2, s[88:91], s52 offen", "pf")
        A.vm = A.vm[:n0 + 1]
    if opt.cpf == 2: p2_prefetch()

    def gate_loads():
        A("v_lshrrev_b32 v2, 5, v0")
        A("v_and_b32 v3, 31, v0")
        A("v_lshlrev_b32 v3, 5, v3")
        A("v_lshl_add_u32 v4, v2, 10, v3")
        A("s_lshl_b32 s69, s20, 8")
        A("s_lshl_b32 s52, s21, 3")
        A("s_add_u32 s69, s69, s52")
        A("s_lshl_b32 s52, s22, 1")
        A("s_add_u32 s69, s69, s52")
        A("s_lshl_b32 s52, s69, 10")
        A.vmem("buffer_load_dwordx4 v[16:19], v4, s[24:27], s52 offen", "g")
        A.vmem("buffer_load_dwordx4 v[20:23], v4, s[24:27], s52 offen offset:16", "g")
        A.vmem("buffer_load_dwordx4 v[24:27], v3, s[48:51], 0 offen", "g")
        A.vmem("buffer_load_dwordx4 v[28:31], v3, s[48:51], 0 offen offset:16", "g")
    def gate_compute():
        A.wait(vm={"g"})
        accv = 38
        first = True
        for i in range(8):
            xr_, wr_ = 16 + i, 24 + i
            A("v_lshlrev_b32 v32, 16, v%d" % xr_)
            A("v_and_b32 v33, 0xffff0000, v%d" % xr_)
            A("v_lshlrev_b32 v34, 16, v%d" % wr_)
            A("v_and_b32 v35, 0xffff0000, v%d" % wr_)
            A("v_mul_f32 v32, v32, v34")
            A("v_mul_f32 v33, v33, v35")
            A("v_cvt_pk_bf16_f32 v32, v32, v33")
            A("v_and_b32 v33, 0xffff0000, v32")
            A("v_lshlrev_b32 v32, 16, v32")
            if first:
                A("v_add_f32 v%d, v32, v33" % accv); first = False
            else:
                A("v_add_f32 v%d, v%d, v32" % (accv, accv))
                A("v_add_f32 v%d, v%d, v33" % (accv, accv))
        for off in (0x041F, 0x081F, 0x101F, 0x201F, 0x401F):
            A("ds_swizzle_b32 v32, v%d offset:0x%x" % (accv, off))
            A("s_waitcnt lgkmcnt(0)")
            A("v_add_f32 v%d, v%d, v32" % (accv, accv))
        A("v_cvt_pk_bf16_f32 v32, v%d, v%d" % (accv, accv))
        A("v_lshlrev_b32 v32, 16, v32")
        A("v_mul_f32 v32, 0xbfb8aa3b, v32")
        A("v_exp_f32 v32, v32")
        A("v_add_f32 v32, 1.0, v32")
        A("v_rcp_f32 v32, v32")
        A("v_cvt_pk_bf16_f32 v32, v32, v32")
        A("v_lshlrev_b32 v32, 16, v32")
        A("v_sub_f32 v33, 1.0, v32")
        A("v_cvt_pk_bf16_f32 v33, v33, v33")
        A("v_lshlrev_b32 v33, 16, v33")
        A("v_lshrrev_b32 v2, 5, v0")
        A("v_lshlrev_b32 v2, 3, v2")
        A("s_lshl_b32 s52, s69, 3")
        A("s_add_u32 s52, s52, 0x%x" % G_OFF)
        A.vmem("buffer_store_dwordx2 v[32:33], v2, s[40:43], s52 offen sc1", "gst")

    WDR = 16; HR = 144; NH = 6
    def wdreg(i): return WDR + 8 * (i % 16)
    def hreg(i, mt): return HR + (i % NH) * 8 + 4 * mt
    GRP = [2, 0, 2, 1, 0, 2, 1]
    def wslot(i): return GRP[i // 4] * 8192 + (i % 4) * 2048
    def p2_setup():
        w2_voffs()
        tr_addrs(66)
        A("s_and_b32 s54, s77, 3")
        A("s_mul_i32 s56, s54, 7")
        A("s_mul_i32 s57, s78, 7")
        A("s_lshr_b32 s57, s57, 1")
        A("s_add_u32 s56, s56, s57")
        A("s_sub_u32 s57, s56, 28")
        A("s_cmp_ge_u32 s56, 28")
        A("s_cselect_b32 s56, s57, s56")
        A("s_lshl_b32 s79, s56, 10")
        A("s_mov_b32 s80, s79")
        A("s_mul_i32 s81, s22, %d" % (28 * 16384))
    def wd_issue(grp):
        for i in range(4 * grp, 4 * grp + 4):
            A("s_add_u32 m0, s66, %d" % wslot(i))
            A("s_lshl4_add_u32 s52, s79, s81")
            A.vmem("buffer_load_dwordx4 v6, s[88:91], s52 offen lds", ("wd", i))
            A.vmem("buffer_load_dwordx4 v7, s[88:91], s52 offen offset:1024 lds", ("wd", i))
            A("s_add_u32 s79, s79, 1024")
            A("s_cmp_eq_u32 s79, 28672")
            A("s_cselect_b32 s79, 0, s79")
    def wd_pull(grp):
        for i in range(4 * grp, 4 * grp + 4):
            A.wait(vm={("wd", i)})
            tr_reads(wslot(i), wdreg(i), ("wd", i))
        A.wait(lg='all')
    def sched(k):
        for a in opt.sched.split("/")[k].split():
            (wd_issue if a[0] == "i" else wd_pull)(int(a[1]))
    def prefetch(part):
        if opt.pf == 0: return
        if opt.pf == 1:
            if part == 0:
                A("v_lshlrev_b32 v2, 7, v0")
                A("s_mul_i32 s52, s2, %d" % (56 * 128))
                A("s_lshl_b32 s53, s22, 11")
                A("s_add_u32 s52, s52, s53")
                A("v_and_b32 v2, 0x780, v2")
                A.vmem("buffer_load_dword v39, v2, s[88:91], s52 offen %s" % opt.pfpol, "pf")
        else:
            if part == 0:
                A("v_lshlrev_b32 v2, 7, v0")
                A("s_lshr_b32 s52, s2, 3")
                A("s_lshl2_add_u32 s52, s52, s22")
                A("s_mul_i32 s53, s52, %d" % (112 * 128))
                A.vmem("buffer_load_dword v39, v2, s[88:91], s53 offen %s" % opt.pfpol, "pf")
            elif part == 1:
                A("v_lshlrev_b32 v2, 7, v0")
                A("s_lshr_b32 s52, s2, 3")
                A("s_lshl2_add_u32 s52, s52, s22")
                A("s_mul_i32 s53, s52, %d" % (112 * 128))
                A("s_add_u32 s53, s53, %d" % (48 * 128))
                A.vmem("buffer_load_dword v39, v2, s[88:91], s53 offen %s" % opt.pfpol, "pf")
            elif part == 2:
                A("v_lshlrev_b32 v2, 7, v0")
                A("s_lshr_b32 s52, s2, 3")
                A("s_lshl2_add_u32 s52, s52, s22")
                srd(A, 8, 86, 512 * 512 * 2)
                A("v_and_b32 v2, 0xf80, v2")
                A("s_lshl_b32 s53, s52, 12")
                A.vmem("buffer_load_dword v39, v2, s[8:11], s53 offen %s" % opt.pfpol, "pf")

    for s in range(8):
        A.wait(vm={("st", s)})
        stamp(A, opt, 17 + s)
        A("s_barrier")
        for f in pend: f()
        pend = []
        if s == 0 and opt.cpf == 1: p2_prefetch()
        if s == opt.gst:
            gate_loads()
        if s + 2 <= 7:
            pend = stage_ops(s + 2)
            for f in pend[:CUTS[s + 1]]: f()
            pend = pend[CUTS[s + 1]:]
        if s == 1:
            A("s_cmp_lg_u32 s71, 0")
            A("s_cbranch_scc1 L_NOFLAG")
            A("v_mov_b32 v37, 1")
            A("s_lshl_b32 s52, s21, 2")
            A("buffer_store_dword v37, off, s[44:47], s52 sc0 sc1")
            A.label("L_NOFLAG")
        if s >= opt.pfs: prefetch(s - opt.pfs)
        if s == opt.gst + 1:
            gate_compute()
        if s == 5:
            p2_setup()
            opt.stv = 188
        if s == 5:
            hflag_addr()
            A.vmem("buffer_load_dword v190, v3, s[44:47], 0 offen sc0 sc1", "dflag")
        if s == 6: sched(0)
        if s == 7: sched(1)
    stamp(A, opt, 30)
    A("s_barrier")
    sched(2)
    T = HR
    A("s_lshl_b32 s52, s22, 6")
    A("v_add_u32 v%d, s52, v0" % T)
    A("v_lshrrev_b32 v%d, 4, v%d" % (T + 1, T))
    A("v_and_b32 v4, 3, v%d" % T)
    A("v_bfe_u32 v5, v%d, 2, 1" % T)
    A("v_lshl_add_u32 v4, v5, 3, v4")
    A("v_bfe_u32 v5, v%d, 3, 1" % T)
    A("v_lshl_add_u32 v4, v5, 2, v4")
    A("v_lshlrev_b32 v4, 2, v4")
    A("v_lshl_add_u32 v5, v%d, 7, v4" % (T + 1))
    A("v_add_u32 v5, 0x%x, v5" % PB)
    A("v_add_u32 v4, 0x%x, v4" % (PB + 16 * 128))
    A("v_lshlrev_b32 v%d, 2, v%d" % (T + 1, T))
    A.wait(vm={"dflag"})
    A("s_movk_i32 s57, 0x%x" % min(SPIN, 0x7fff))
    A.label("L_DPOLL")
    A("v_cmp_ne_u32 vcc, 0, v190")
    A("s_cmp_eq_u32 vcc_lo, -1")
    A("s_cbranch_scc1 L_DPOLL_OK")
    A("s_sleep 1")
    A("buffer_load_dword v190, v3, s[44:47], 0 offen sc0 sc1")
    A("s_waitcnt vmcnt(0)")
    A("s_sub_u32 s57, s57, 1")
    A("s_cmp_lg_u32 s57, 0")
    A("s_cbranch_scc1 L_DPOLL")
    A.label("L_DPOLL_OK")
    stamp(A, opt, 31)
    A("s_barrier")
    for w in range(4):
        A("ds_read_b32 v%d, v5 offset:%d" % (T + 2 + w, w * 4096))
    for w in range(4):
        A("ds_read_b32 v%d, v4 offset:%d" % (T + 6 + w, w * 4096))
    A("s_waitcnt lgkmcnt(0)")
    A("s_barrier")
    A("v_add_f32 v%d, v%d, v%d" % (T + 2, T + 2, T + 3)); A("v_add_f32 v%d, v%d, v%d" % (T + 4, T + 4, T + 5))
    A("v_add_f32 v%d, v%d, v%d" % (T + 6, T + 6, T + 7)); A("v_add_f32 v%d, v%d, v%d" % (T + 8, T + 8, T + 9))
    A("v_add_f32 v%d, v%d, v%d" % (T + 2, T + 2, T + 4)); A("v_add_f32 v%d, v%d, v%d" % (T + 6, T + 6, T + 8))
    A("s_cmp_lg_u32 s22, 0")
    A("s_cbranch_scc1 L_NOZ")
    A("s_mov_b64 exec, 0xffff")
    A("buffer_atomic_add_f32 v%d, v%d, s[40:43], s70 offen offset:1024" % (T + 6, T + 1))
    A("s_mov_b64 exec, -1")
    A.label("L_NOZ")
    A.vmem("buffer_atomic_add_f32 v%d, v%d, s[40:43], s70 offen" % (T + 2, T + 1), "atom")
    stamp(A, opt, 25)
    sched(3)
    A("s_mul_i32 s52, s77, %d" % (2 * 114688))
    A("s_mul_i32 s53, s22, 28672")
    A("s_add_u32 s52, s52, s53")
    A("v_add_u32 v1, s52, v14")
    A("v_add_u32 v2, 114688, v1")
    A("s_mul_i32 s52, s22, 7")
    A("s_lshl_b32 s60, 0x7f, s52")
    A("s_and_b32 s53, s77, 3")
    A("s_lshl3_add_u32 s53, s53, s23")
    A("s_lshl_b32 s53, 1, s53")
    A("s_or_b32 s60, s60, s53")
    A("s_lshl2_add_u32 s52, s20, s22")
    A("s_lshl2_add_u32 s52, s52, s70")
    A("v_mov_b32 v5, 1")
    A.wait(vm={"atom"})
    A.vmem("buffer_store_dword v5, off, s[40:43], s52 offset:%d sc1" % KVF)
    stamp(A, opt, 26)
    sched(4)
    poll_h("L_FPOLL", 60)
    opt.stv = 12
    stamp(A, opt, 27)
    def h_loads(i):
        A.vmem("buffer_load_dwordx4 %s, v1, s[40:43], s80 offen sc1" % vr(hreg(i, 0), 4), ("h", i))
        A.vmem("buffer_load_dwordx4 %s, v2, s[40:43], s80 offen sc1" % vr(hreg(i, 1), 4), ("h", i))
        A("s_add_u32 s80, s80, 1024")
        A("s_cmp_eq_u32 s80, 28672")
        A("s_cselect_b32 s80, 0, s80")
    for i in range(NH): h_loads(i)
    g_load(10)
    NI = 28
    for i in range(NI):
        A.wait(vm={("h", i)})
        for t in range(2):
            for mt in range(2):
                A.wait(lg={("wd", i, t)})
                d = vr(acc2(t, mt), 16)
                A("v_mfma_f32_32x32x16_bf16 %s, %s, %s, %s" % (d, vr(wdreg(i) + 4 * t, 4), vr(hreg(i, mt), 4), "0" if i == 0 else d))
        if i + NH < NI: h_loads(i + NH)
        if i + 16 < NI: tr_reads(wslot(i + 16), wdreg(i + 16), ("wd", i + 16))
    stamp(A, opt, 28)
    for s_ in write_partial(66, 24): A.lds(s_)

    A.label("L_RED")
    A.vm = []
    A("v_lshrrev_b32 v16, 3, v0")
    A("v_and_b32 v17, 7, v0")
    A("v_lshlrev_b32 v18, 1, v17")
    A("v_xor_b32 v18, v18, v16")
    A("s_lshl_b32 s52, s23, 3")
    A("v_add_u32 v16, s52, v16")
    A("v_lshlrev_b32 v18, 4, v18")
    A("v_lshl_add_u32 v1, v16, 8, v18")
    A("v_xor_b32 v2, 16, v1")
    A("v_add_u32 v3, 73728, v1")
    A("v_add_u32 v4, 73728, v2")
    A("v_add_u32 v5, 147456, v1")
    A("v_add_u32 v6, 147456, v2")
    A("v_lshlrev_b32 v17, 4, v17")
    A("v_lshl_add_u32 v0, v16, 10, v17")
    A("s_lshl_b32 s66, s77, 16")
    A("s_lshl_b32 s52, s78, 7")
    A("s_add_u32 s66, s66, s52")
    A("s_waitcnt vmcnt(0) lgkmcnt(0)")
    A.lg = []
    A("s_barrier")
    opt.stv = 12
    stamp(A, opt, 29)
    R0 = 64
    plist = [(1, 0), (1, 24576), (1, 49152), (3, 0), (3, 24576), (3, 40960), (3, 57344), (5, 0)]
    for p, (areg, off) in enumerate(plist):
        for c in range(2):
            A.lds("ds_read_b128 %s, v%d offset:%d" % (vr(R0 + p * 8 + c * 4, 4), areg + c, off), ("r", p))
    for p in (1, 2, 3, 5, 6, 7):
        A.wait(lg={("r", p)})
        b = R0 + (p // 4) * 32
        for j in range(4):
            A("v_pk_add_f32 %s, %s, %s" % (vr(b + 2 * j, 2), vr(b + 2 * j, 2), vr(R0 + p * 8 + 2 * j, 2)))
        if p == 3:
            for j in range(8):
                A("v_mul_f32 v%d, v%d, v11" % (R0 + j, R0 + j))
    for j in range(8):
        A("v_fmac_f32 v%d, v%d, v10" % (R0 + j, R0 + 32 + j))
    for j in range(4):
        A("v_cvt_pk_bf16_f32 v%d, v%d, v%d" % (R0 + 8 + j, R0 + 2 * j, R0 + 2 * j + 1))
    A.vmem("buffer_store_dwordx4 %s, v0, s[92:95], s66 offen" % vr(R0 + 8, 4))
    if opt.stamps:
        A.wait(vm='all')
        stamp(A, opt, 9)
        A("v_mbcnt_lo_u32_b32 v1, -1, 0")
        A("v_mbcnt_hi_u32_b32 v1, -1, v1")
        A("v_lshlrev_b32 v1, 2, v1")
        A("s_lshl3_add_u32 s3, s2, s23")
        A("s_lshl_b32 s3, s3, 8")
        A("s_add_u32 s3, s3, 0x%x" % ST_OFF)
        A("buffer_store_dword v15, v1, s[40:43], s3 offen")
    A.label("L_END")
    A("s_endpgm")
    A.lines = hz.fix(A.lines, True)
    return A.text()

def main():
    ap = argparse.ArgumentParser()
    ap.add_argument("-o", default="out.s")
    ap.add_argument("--stamps", action="store_true")
    ap.add_argument("--k1win", type=int, default=4)
    ap.add_argument("--cuts", type=str, default="8,13,13,13,13,13,13")
    ap.add_argument("--gst", type=int, default=3)
    ap.add_argument("--touch", type=int, default=0)
    ap.add_argument("--pf", type=int, default=0)
    ap.add_argument("--pfs", type=int, default=3)
    ap.add_argument("--warm", type=int, default=0)
    ap.add_argument("--cpf", type=int, default=1)
    ap.add_argument("--sched", type=str, default="i0/i1 p0 i2/i3/p1 i4 p2 i5/p3 i6")
    ap.add_argument("--pfpol", type=str, default="")
    ap.add_argument("--psleep", type=int, default=1)
    ap.add_argument("--aprio", type=int, default=0)
    ap.add_argument("--npre", type=int, default=4)
    ap.add_argument("--dyn", type=int, default=0)
    ap.add_argument("--dynw", type=int, default=0)
    opt = ap.parse_args()
    out = HEADER
    out += "; @launch grid=(256,1,1) block=(512,1,1) lds=%d\n" % LDS
    out += '.amdgcn_target "amdgcn-amd-amdhsa--gfx950"\n.text\n'
    out += fused(opt)
    out += '.section .rodata,"a"\n'
    out += kd(NAME + "_kernel", 256, 102, 256)
    open(opt.o, "w").write(out)

if __name__ == "__main__":
    main()
```

```python
import sys, argparse
from gen import Asm, vr, sr, kd, NAME, HEADER, LOG2E
import hz, post

H_OFF   = 0x0
Q_OFF   = 0x700000
KVT_OFF = 0x900000
KVF     = 384
HF      = 896
G_OFF   = 0x910000
ST_OFF  = 0x1000000
WS_SIZE = 0x2000000
WB = 98304
LDS = 163840
PB = WB + 2 * 20480
SPIN = 0x7fff
SX, SLO, SHI, SKV, SWS, SDBG, SGW, SWD, SOUT, SWO = 24, 28, 32, 36, 40, 44, 48, 88, 92, 96
def S(d): return "s[%d:%d]" % (d, d + 3)

def fused(opt):
    A = Asm()
    def stamp(idx):
        if not opt.stamps: return
        A("s_memrealtime s[100:101]")
        A("s_waitcnt lgkmcnt(0)")
        A.lg = []
        A("v_writelane_b32 v15, s100, %d" % idx)
        A("s_nop 0")
    def mark(s): A.raw(";@" + s)
    KN = NAME + "_kernel"
    A.raw(".globl %s\n.p2align 8\n.type %s,@function\n%s:" % (KN, KN, KN))
    A("s_cmp_ge_u32 s2, 256")
    A("s_cbranch_scc1 L_END")
    A("s_load_dwordx4 s[4:7], s[0:1], 0")
    A("s_load_dwordx8 s[8:15], s[0:1], 32")
    A("s_load_dwordx4 s[16:19], s[0:1], 72")
    A("s_load_dwordx2 s[84:85], s[0:1], 64")
    A("s_load_dwordx2 s[86:87], s[0:1], 16")
    if opt.stamps:
        A("v_mov_b32 v15, 0")
        if opt.st0: stamp(0)
    A("v_lshrrev_b32 v1, 6, v0")
    A("v_and_b32 v0, 63, v0")
    A("s_and_b32 s20, s2, 7")
    A("v_readfirstlane_b32 s23, v1")
    A("s_lshr_b32 s21, s2, 3")
    A("s_and_b32 s53, s21, 3")
    A("s_lshr_b32 s78, s21, 2")
    A("s_and_b32 s52, s20, 1")
    A("s_lshr_b32 s54, s20, 1")
    A("s_lshl2_add_u32 s77, s52, s54")
    A("s_lshl2_add_u32 s77, s77, s53")
    A("s_lshl2_add_u32 s20, s52, s53")
    A("s_lshl3_add_u32 s21, s54, s78")
    A("s_and_b32 s22, s23, 3")
    A("s_mov_b32 s56, 0x%x" % (512 * 1792 * 2))
    A("s_mov_b32 s57, 0x%x" % (512 * 1536 * 2))
    A("s_cmp_lt_u32 s21, 28")
    A("s_cselect_b32 s%d, s56, s57" % (SLO + 2))
    A("s_cselect_b32 s%d, s56, s57" % (SHI + 2))
    A("s_movk_i32 s56, 3584")
    A("s_movk_i32 s55, 3072")
    A("s_cselect_b32 s58, s56, s55")
    A("s_mov_b32 s%d, s57" % (SKV + 2))
    A("s_mov_b32 s%d, 0x%x" % (SX + 2, 2048 * 512 * 2))
    for d in (SLO, SHI, SKV, SX): A("s_mov_b32 s%d, 0x20000" % (d + 3))
    def srd_base(d, lo):
        A("s_mov_b32 s%d, s%d" % (d, lo))
        A("s_and_b32 s%d, s%d, 0xffff" % (d + 1, lo + 1))
    def srds_first():
        A("s_cmp_lt_u32 s21, 28")
        A("s_cselect_b32 s%d, s8, s6" % SLO)
        A("s_cselect_b32 s%d, s9, s7" % (SLO + 1))
        A("s_cselect_b32 s%d, s10, s6" % SHI)
        A("s_cselect_b32 s%d, s11, s7" % (SHI + 1))
        A("s_and_b32 s%d, s%d, 0xffff" % (SLO + 1, SLO + 1))
        A("s_and_b32 s%d, s%d, 0xffff" % (SHI + 1, SHI + 1))
        srd_base(SKV, 6)
        srd_base(SX, 4)
    def srds_rest():
        for d, lo, size in ((SWS, 18, WS_SIZE), (SDBG, 16, 256), (SGW, 14, 1024), (SWD, 12, 1792 * 512 * 2),
                            (SOUT, 84, 2048 * 512 * 2), (SWO, 86, 512 * 512 * 2)):
            srd_base(d, lo)
            A("s_mov_b32 s%d, 0x%x" % (d + 2, size))
            A("s_mov_b32 s%d, 0x20000" % (d + 3))
    A("s_cmp_lt_u32 s23, 4")
    A("s_cbranch_scc1 L_COMPUTE")

    ACC2 = 192
    DKV, DZ, ONES, TT = 72, 76, 80, 84
    def acc2(t, mt): return ACC2 + (t * 2 + mt) * 16

    def w2_voffs():
        A("v_lshrrev_b32 v4, 3, v0")
        A("v_and_b32 v5, 7, v0")
        A("v_lshlrev_b32 v5, 4, v5")
        A("v_lshl_add_u32 v5, v4, 11, v5")
        A("s_lshl_b32 s52, s78, 7")
        A("v_add_u32 v6, s52, v5")
        A("v_xor_b32 v7, 64, v6")
    def tr_addrs(base_s):
        A("v_bfe_u32 v8, v0, 1, 1")
        A("v_bfe_u32 v4, v0, 4, 1")
        A("v_lshl_add_u32 v8, v4, 1, v8")
        A("v_bfe_u32 v4, v0, 2, 1")
        A("v_lshl_add_u32 v8, v4, 2, v8")
        A("v_lshlrev_b32 v8, 4, v8")
        A("v_lshl_add_u32 v8, v4, 10, v8")
        A("v_and_b32 v4, 1, v0")
        A("v_lshl_add_u32 v8, v4, 3, v8")
        A("v_bfe_u32 v4, v0, 3, 1")
        A("v_lshl_add_u32 v8, v4, 7, v8")
        A("v_lshrrev_b32 v4, 5, v0")
        A("v_lshl_add_u32 v8, v4, 8, v8")
        A("v_add_u32 v8, s%d, v8" % base_s)
        A("v_xor_b32 v9, 64, v8")
    def tr_reads(off, dst, tag):
        for t in range(2):
            for rd in range(2):
                A.lds("ds_read_b64_tr_b16 %s, v%d offset:%d" % (vr(dst + 4 * t + 2 * rd, 2), 8 + t, off + rd * 512), tag + (t,))
    def poll_h(lbl, mask_s):
        A("s_movk_i32 s57, 0x%x" % SPIN)
        A.label(lbl)
        A("buffer_load_dword v4, v3, %s, s83 offen sc1" % S(SWS))
        A("s_waitcnt vmcnt(0)")
        A("v_cmp_ne_u32 vcc, 0, v4")
        A("s_and_b32 s52, vcc_lo, s%d" % mask_s)
        A("s_cmp_eq_u32 s52, s%d" % mask_s)
        A("s_cbranch_scc1 %s_OK" % lbl)
        if opt.psleep: A("s_sleep %d" % opt.psleep)
        A("s_sub_u32 s57, s57, 1")
        A("s_cmp_lg_u32 s57, 0")
        A("s_cbranch_scc1 %s" % lbl)
        A.label(lbl + "_OK")
        A.vm = []
    def hflag_addr():
        A("v_and_b32 v3, 31, v0")
        A("v_lshlrev_b32 v3, 2, v3")
        A("s_lshl_b32 s83, s77, 11")
        A("s_add_u32 s83, s83, 0x%x" % (KVT_OFF + HF))
    def g_load(dst):
        A("v_lshrrev_b32 v4, 3, v0")
        A("v_lshlrev_b32 v4, 3, v4")
        A("s_lshl_b32 s52, s77, 9")
        A("s_lshl_b32 s53, s23, 6")
        A("s_add_u32 s52, s52, s53")
        A("s_add_u32 s52, s52, 0x%x" % G_OFF)
        A.vmem("buffer_load_dwordx2 %s, v4, %s, s52 offen sc1" % (vr(dst, 2), S(SWS)), "g")
    def write_partial(base_s, tmp):
        A("v_and_b32 v%d, 31, v0" % tmp)
        A("v_lshrrev_b32 v%d, 5, v0" % (tmp + 1))
        A("v_and_b32 v%d, 7, v0" % (tmp + 2))
        A("v_xor_b32 v%d, v%d, v%d" % (tmp + 1, tmp + 1, tmp + 2))
        A("v_lshlrev_b32 v%d, 4, v%d" % (tmp + 1, tmp + 1))
        A("v_lshl_add_u32 v%d, v%d, 8, v%d" % (tmp, tmp, tmp + 1))
        A("v_add_u32 v%d, s%d, v%d" % (tmp, base_s, tmp))
        for g4 in range(1, 4):
            A("v_xor_b32 v%d, %d, v%d" % (tmp + g4, g4 * 32, tmp))
        return [("ds_write_b128 v%d, %s offset:%d" % (tmp + g4, vr(acc2(t, mt) + 4 * g4, 4), mt * 8192 + t * 128))
                for t in range(2) for mt in range(2) for g4 in range(4)]
    def hop_run(g):
        if not opt.hop: return
        A("s_mov_b64 exec, 0")
        for w in range(3):
            A("s_cmp_eq_u32 s22, %d" % w)
            A("s_cbranch_scc1 @ENT%d_%d" % (g, w))
        A("s_branch @ENT%d_3" % g)
        A.label("L_HOPRET%d" % g)
        A("s_mov_b64 exec, -1")

    VX, VW, VKV = 192, 196, 198
    A("v_lshrrev_b32 v2, 3, v0")
    A("v_and_b32 v3, 7, v0")
    A("v_lshrrev_b32 v4, 4, v0")
    A("v_and_b32 v6, 1, v4")
    A("v_lshlrev_b32 v6, 2, v6")
    A("v_xor_b32 v6, v3, v6")
    A("v_lshlrev_b32 v6, 4, v6")
    A("v_mad_u32_u24 v%d, v2, s58, v6" % VW)
    A("s_lshl_b32 s64, s58, 3")
    A("s_sub_u32 s64, s64, 1024")
    A("v_add_u32 v%d, s64, v%d" % (VW + 1, VW))
    A("v_xor_b32 v5, v3, v4")
    A("v_lshlrev_b32 v5, 4, v5")
    A("v_lshl_add_u32 v%d, v2, 10, v5" % VX)
    A("v_xor_b32 v5, 64, v%d" % VX)
    A("v_add_u32 v%d, %d, v5" % (VX + 1, 7168))
    A("v_add_u32 v%d, %d, v%d" % (VX + 2, 2 * 7168, VX))
    A("v_add_u32 v%d, %d, v5" % (VX + 3, 3 * 7168))
    A("v_lshrrev_b32 v2, 2, v0")
    A("v_bfe_u32 v3, v0, 1, 1")
    A("v_and_b32 v4, 1, v0")
    A("v_lshlrev_b32 v4, 4, v4")
    A("v_lshl_add_u32 v4, v3, 10, v4")
    A("v_mad_u32_u24 v%d, v2, s55, v4" % VKV)
    A("s_lshl_b32 s60, s20, 18")
    A("s_lshl_b32 s52, s22, 16")
    A("s_add_u32 s60, s60, s52")
    A("s_lshl_b32 s52, s21, 7")
    A("s_sub_u32 s53, s21, 28")
    A("s_lshl_b32 s53, s53, 8")
    A("s_add_u32 s54, s53, 128")
    A("s_cmp_lt_u32 s21, 28")
    A("s_cselect_b32 s61, s52, s53")
    A("s_cselect_b32 s62, s52, s54")
    A("s_lshl_b32 s52, s22, 4")
    A("s_mul_i32 s53, s52, s58")
    A("s_add_u32 s61, s61, s53")
    A("s_add_u32 s62, s62, s53")
    A("s_mul_i32 s63, s52, s55")
    A("s_lshl_b32 s53, s21, 5")
    A("s_add_u32 s63, s63, s53")
    A("s_add_u32 s63, s63, 1024")
    A("s_lshl_b32 s65, s58, 6")
    A("s_mul_i32 s66, s22, 24576")
    A("s_lshl_b32 s67, s22, 11")
    A("s_add_u32 s67, s67, 0x%x" % WB)
    A("s_lshl_b32 s68, s22, 10")
    A("s_add_u32 s68, s68, 0x%x" % (WB + 16384))
    WIN = opt.k1win
    if WIN == 8: A("s_lshl1_add_u32 s72, s20, s21")
    else: A("s_add_u32 s72, s20, s21")

    def stage_pre(s):
        A("s_add_u32 s76, s72, %d" % s)
        A("s_and_b32 s76, s76, %d" % (WIN - 1))
        if s & ~(WIN - 1): A("s_add_u32 s76, s76, %d" % (s & ~(WIN - 1)))
        A("s_mul_i32 s74, s76, s65")
        A("s_add_u32 s82, s74, s62")
        A("s_add_u32 s74, s74, s61")
        A("s_lshl_b32 s73, s76, 7")
        A("s_add_u32 s73, s73, s60")
        A("s_add_u32 s64, s73, 0x8000")
        A("s_mul_i32 s75, s76, %d" % (64 * 3072))
        A("s_add_u32 s75, s75, s63")
    def stage_ops(s, pre=True):
        slot = s % 3
        tag = ("st", s)
        ops = []
        def ld(m0s, m0i, v, srd_, so, off, first=False):
            def f():
                if first and pre: stage_pre(s)
                if m0s is not None: A("s_add_u32 m0, s%d, %d" % (m0s, m0i))
                A.vmem("buffer_load_dwordx4 v%d, %s, s%d offen%s lds" % (v, S(srd_), so, (" offset:%d" % off) if off else ""), tag)
            f.m0 = (m0s, m0i)
            return f
        ops.append(ld(67, slot * 20480, VW, SLO, 74, 0, True))
        ops.append(ld(None, 0, VW + 1, SLO, 74, 1024))
        ops.append(ld(67, slot * 20480 + 8192, VW, SHI, 82, 0))
        ops.append(ld(None, 0, VW + 1, SHI, 82, 1024))
        ops.append(ld(68, slot * 20480, VKV, SKV, 75, 0))
        for a in range(8):
            ops.append(ld(66 if a % 4 == 0 else None, slot * 8192 + a * 1024, VX + a % 4, SX, 73 if a < 4 else 64, (a % 4) * 1024))
        return ops
    stage_pre(0)
    A("s_waitcnt lgkmcnt(0)")
    srds_first()
    stamp(16)
    for f in stage_ops(0, False): f()
    CUTS = [int(x) for x in opt.cuts.split(",")]
    assert all(c in (0, 2, 4, 5, 9, 13) for c in CUTS)
    pend = stage_ops(1)
    for f in pend[:CUTS[0]]: f()
    pend = pend[CUTS[0]:]
    srds_rest()
    A("v_lshlrev_b32 v14, 4, v0")
    A("s_lshl_b32 s70, s21, 11")
    A("s_add_u32 s70, s70, 0x%x" % KVT_OFF)
    for v in (1, 2, 3, 4, 5, 6, 7, 145): A("v_mov_b32 v%d, 0" % v)
    mark("hop 0 0")

    def gate_loads():
        A("s_lshl_b32 s76, s20, 8")
        A("s_lshl3_add_u32 s76, s21, s76")
        A("s_lshl1_add_u32 s76, s22, s76")
        A("s_lshl_b32 s52, s76, 10")
        A.vmem("buffer_load_dwordx4 v[24:27], v8, %s, 0 offen" % S(SGW), "g")
        A.vmem("buffer_load_dwordx4 v[28:31], v8, %s, s52 offen" % S(SX), "g")
        A.vmem("buffer_load_dwordx4 v[32:35], v8, %s, s52 offen offset:1024" % S(SX), "g")
    def gate_compute():
        A.wait(vm={"g"})
        for i in range(4):
            A("v_lshlrev_b32 v%d, 16, v%d" % (36 + 2 * i, 24 + i))
            A("v_and_b32 v%d, s69, v%d" % (37 + 2 * i, 24 + i))
        for r in range(2):
            for i in range(4):
                A("v_lshlrev_b32 v%d, 16, v%d" % (44 + 2 * i, 28 + 4 * r + i))
                A("v_and_b32 v%d, s69, v%d" % (45 + 2 * i, 28 + 4 * r + i))
            for i in range(4):
                A("v_pk_mul_f32 %s, %s, %s" % (vr(44 + 2 * i, 2), vr(44 + 2 * i, 2), vr(36 + 2 * i, 2)))
            for i in range(4):
                A("v_cvt_pk_bf16_f32 v%d, v%d, v%d" % (44 + i, 44 + 2 * i, 45 + 2 * i))
            for i in range(4):
                A("v_dot2_f32_bf16 v%d, v%d, v%d, %s" % (52 + r, 44 + i, ONES, "0" if i == 0 else "v%d" % (52 + r)))
        A("s_nop 3")
        A("v_permlane32_swap_b32 v52, v53")
        A("s_nop 0")
        A("v_add_f32 v52, v52, v53")
        for m in ("quad_perm:[1,0,3,2]", "quad_perm:[2,3,0,1]", "row_half_mirror", "row_mirror"):
            A("s_nop 1")
            A("v_add_f32_dpp v52, v52, v52 %s row_mask:0xf bank_mask:0xf" % m)
        A("v_mov_b32 v53, v52")
        A("s_nop 1")
        A("v_permlane16_swap_b32 v52, v53")
        A("s_nop 0")
        A("v_add_f32 v52, v52, v53")
        A("v_cvt_pk_bf16_f32 v32, v52, v52")
        A("v_lshlrev_b32 v32, 16, v32")
        A("v_mul_f32 v32, 0xbfb8aa3b, v32")
        A("v_exp_f32 v32, v32")
        A("v_add_f32 v32, 1.0, v32")
        A("v_rcp_f32 v32, v32")
        A("v_cvt_pk_bf16_f32 v32, v32, v32")
        A("v_lshlrev_b32 v32, 16, v32")
        A("v_sub_f32 v33, 1.0, v32")
        A("v_cvt_pk_bf16_f32 v33, v33, v33")
        A("v_lshlrev_b32 v33, 16, v33")
        A("v_lshrrev_b32 v34, 2, v0")
        A("s_lshl_b32 s52, s76, 3")
        A("s_add_u32 s52, s52, 0x%x" % G_OFF)
        A("s_mov_b32 exec_lo, 1")
        A("s_mov_b32 exec_hi, 1")
        A.vmem("buffer_store_dwordx2 v[32:33], v34, %s, s52 offen sc1" % S(SWS), "gst")
        A("s_mov_b64 exec, -1")

    WDR = 16; HR = 144; NH = 6
    def hreg(i, mt): return HR + (i % NH) * 8 + 4 * mt
    gslot = {}
    wreg = {}
    freeregs = [WDR + 8 * i for i in range(16)]
    def wslot(i): return gslot[i // 4] * 8192 + (i % 4) * 2048
    def p2_setup():
        w2_voffs()
        tr_addrs(66)
        A("s_and_b32 s54, s77, 3")
        A("s_mul_i32 s56, s54, 7")
        A("s_mul_i32 s57, s78, 7")
        A("s_lshr_b32 s57, s57, 1")
        A("s_add_u32 s56, s56, s57")
        A("s_sub_u32 s57, s56, 28")
        A("s_cmp_ge_u32 s56, 28")
        A("s_cselect_b32 s56, s57, s56")
        A("s_lshl_b32 s79, s56, 10")
        A("s_mov_b32 s80, s79")
        A("s_mul_i32 s81, s22, %d" % (28 * 16384))
        A("s_movk_i32 s59, 28672")
    def wd_issue(slot):
        grp = len(gslot); gslot[grp] = slot
        for i in range(4 * grp, 4 * grp + 4):
            A("s_add_u32 m0, s66, %d" % wslot(i))
            A("s_lshl4_add_u32 s52, s79, s81")
            A.vmem("buffer_load_dwordx4 v6, %s, s52 offen lds" % S(SWD), ("wd", i))
            A.vmem("buffer_load_dwordx4 v7, %s, s52 offen offset:1024 lds" % S(SWD), ("wd", i))
            A("s_addk_i32 s79, 1024")
            A("s_cmp_eq_u32 s79, s59")
            A("s_cselect_b32 s79, 0, s79")
    def wd_pull(grp):
        for i in range(4 * grp, 4 * grp + 4):
            A.wait(vm={("wd", i)})
            wreg[i] = freeregs.pop(0)
            tr_reads(wslot(i), wreg[i], ("wd", i))
        A.wait(lg='all')
    def kvflag():
        A.wait(vm={"atom"})
        A.vmem("buffer_store_dword v5, off, %s, s71 offset:%d sc1" % (S(SWS), KVF))
        stamp(26)
    def sched(k):
        for a in opt.sched.split("/")[k].split():
            if a == "f": kvflag()
            elif a == "h": hop_run(1)
            else: (wd_issue if a[0] == "i" else wd_pull)(int(a[1]))
    def prefetch(part, va=2, vd=39):
        if opt.pf == 0 or part > 2: return
        A("v_lshlrev_b32 v%d, 7, v0" % va)
        if opt.pf == 3:
            if part == 0:
                A("s_lshl2_add_u32 s52, s2, s22")
                A("s_mul_i32 s53, s52, %d" % (14 * 128))
                A("v_min_u32 v%d, %d, v%d" % (va, 13 * 128, va))
                A.vmem("buffer_load_dword v%d, v%d, %s, s53 offen %s" % (vd, va, S(SWD), opt.pfpol), "pf")
            elif part == 2:
                A("s_lshl2_add_u32 s52, s2, s22")
                A("s_lshl_b32 s53, s52, 9")
                A("v_and_b32 v%d, 0x180, v%d" % (va, va))
                A.vmem("buffer_load_dword v%d, v%d, %s, s53 offen %s" % (vd, va, S(SWO), opt.pfpol), "pf")
            return
        A("s_lshr_b32 s52, s2, 3")
        A("s_lshl2_add_u32 s52, s52, s22")
        if part == 0:
            A("s_mul_i32 s53, s52, %d" % (112 * 128))
            A.vmem("buffer_load_dword v%d, v%d, %s, s53 offen %s" % (vd, va, S(SWD), opt.pfpol), "pf")
        elif part == 1:
            A("s_mul_i32 s53, s52, %d" % (112 * 128))
            A("s_add_u32 s53, s53, %d" % (64 * 128))
            A("v_min_u32 v%d, %d, v%d" % (va, 47 * 128, va))
            A.vmem("buffer_load_dword v%d, v%d, %s, s53 offen %s" % (vd, va, S(SWD), opt.pfpol), "pf")
        elif part == 2:
            A("v_and_b32 v%d, 0xf80, v%d" % (va, va))
            A("s_lshl_b32 s53, s52, 12")
            A.vmem("buffer_load_dword v%d, v%d, %s, s53 offen %s" % (vd, va, S(SWO), opt.pfpol), "pf")
    PFS = [int(x) for x in opt.pfs.split(",")]

    T = HR
    for s in range(8):
        A.wait(vm={("st", s)})
        stamp(17 + s)
        A("s_barrier")
        for f in pend: f()
        pend = []
        if s + 2 <= 7:
            pend = stage_ops(s + 2)
            for f in pend[:CUTS[s + 1]]: f()
            pend = pend[CUTS[s + 1]:]
        for part in range(3):
            if PFS[part] == s: prefetch(part)
        if s == opt.hops: hop_run(1)
        if s == 5:
            p2_setup()
            hflag_addr()
            A.vmem("buffer_load_dword v190, v3, %s, 0 offen sc0 sc1" % S(SDBG), "dflag")
        if s == 6:
            sched(0)
            A("s_lshl_b32 s52, s22, 8")
            A("s_add_u32 s52, s52, 0x%x" % PB)
            A("v_lshlrev_b32 v%d, 2, v0" % (T + 1))
            A("v_add_u32 v4, s52, v%d" % (T + 1))
            A("s_lshl_b32 s69, s22, 9")
            A("s_add_u32 s69, s69, s70")
            A("s_mul_i32 s52, s77, %d" % (2 * 114688))
            A("s_mul_i32 s53, s22, 28672")
            A("s_add_u32 s52, s52, s53")
            A("v_add_u32 v1, s52, v14")
            A("v_add_u32 v2, 114688, v1")
            A("s_mul_i32 s52, s22, 7")
            A("s_lshl_b32 s60, 0x7f, s52")
            A("s_and_b32 s53, s77, 3")
            A("s_lshl3_add_u32 s53, s53, s23")
            A("s_lshl_b32 s53, 1, s53")
            A("s_or_b32 s60, s60, s53")
            A("s_lshl2_add_u32 s71, s20, s22")
            A("s_lshl2_add_u32 s71, s71, s70")
            A("v_mov_b32 v5, 1")
        if s == 7:
            A.wait(vm={"dflag"})
            A("s_movk_i32 s57, 0x%x" % SPIN)
            A.label("L_DPOLL")
            A("v_cmp_ne_u32 vcc, 0, v190")
            A("s_cmp_eq_u32 vcc_lo, -1")
            A("s_cbranch_scc1 L_DPOLL_OK")
            A("s_sleep 1")
            A("buffer_load_dword v190, v3, %s, 0 offen sc0 sc1" % S(SDBG))
            A("s_waitcnt vmcnt(0)")
            A("s_sub_u32 s57, s57, 1")
            A("s_cmp_lg_u32 s57, 0")
            A("s_cbranch_scc1 L_DPOLL")
            A.label("L_DPOLL_OK")
            sched(1)
    stamp(30)
    A("s_barrier")
    for w in range(4):
        A("ds_read_b32 v%d, v4 offset:%d" % (T + 2 + w, w * 2048))
    for w in range(4):
        A("ds_read_b32 v%d, v4 offset:%d" % (T + 6 + w, w * 2048 + 1024))
    A("s_waitcnt lgkmcnt(0)")
    A("s_barrier")
    A("v_add_f32 v%d, v%d, v%d" % (T + 2, T + 2, T + 3)); A("v_add_f32 v%d, v%d, v%d" % (T + 4, T + 4, T + 5))
    A("v_add_f32 v%d, v%d, v%d" % (T + 6, T + 6, T + 7)); A("v_add_f32 v%d, v%d, v%d" % (T + 8, T + 8, T + 9))
    A("v_add_f32 v%d, v%d, v%d" % (T + 2, T + 2, T + 4))
    A.vmem("buffer_atomic_add_f32 v%d, v%d, %s, s69 offen" % (T + 2, T + 1, S(SWS)), "atom")
    A("v_add_f32 v%d, v%d, v%d" % (T + 6, T + 6, T + 8))
    A("s_mov_b64 exec, 15")
    A.vmem("buffer_atomic_add_f32 v%d, v%d, %s, s69 offen offset:256" % (T + 6, T + 1, S(SWS)), "atom")
    A("s_mov_b64 exec, -1")
    stamp(25)
    sched(2)
    stamp(31)
    sched(3)
    mark("hop %d 2" % opt.hgf)
    poll_h("L_FPOLL", 60)
    stamp(27)
    def h_loads(i):
        A.vmem("buffer_load_dwordx4 %s, v1, %s, s80 offen sc1" % (vr(hreg(i, 0), 4), S(SWS)), ("h", i))
        A.vmem("buffer_load_dwordx4 %s, v2, %s, s80 offen sc1" % (vr(hreg(i, 1), 4), S(SWS)), ("h", i))
        A("s_addk_i32 s80, 1024")
        A("s_cmp_eq_u32 s80, s59")
        A("s_cselect_b32 s80, 0, s80")
    for i in range(NH): h_loads(i)
    g_load(10)
    NI = 28
    assert len(gslot) == 7
    resid = [i for i in range(NI) if i not in wreg]
    mark("al 2")
    while resid and freeregs:
        i = resid.pop(0); wreg[i] = freeregs.pop(0); tr_reads(wslot(i), wreg[i], ("wd", i))
    for i in range(NI):
        A.wait(vm={("h", i)})
        for t in range(2):
            for mt in range(2):
                A.wait(lg={("wd", i, t)})
                d = vr(acc2(t, mt), 16)
                A("v_mfma_f32_32x32x16_bf16 %s, %s, %s, %s" % (d, vr(wreg[i] + 4 * t, 4), vr(hreg(i, mt), 4), "0" if i == 0 else d))
        if i + NH < NI: h_loads(i + NH)
        if resid:
            k = resid.pop(0); assert k > i + 1
            wreg[k] = wreg[i]; tr_reads(wslot(k), wreg[k], ("wd", k))
    mark("al 1")
    stamp(28)
    for s_ in write_partial(66, 24): A.lds(s_)

    A.label("L_RED")
    A.vm = []
    A("v_lshrrev_b32 v16, 3, v0")
    A("v_and_b32 v17, 7, v0")
    A("v_lshlrev_b32 v18, 1, v17")
    A("v_xor_b32 v18, v18, v16")
    A("s_lshl_b32 s52, s23, 3")
    A("v_add_u32 v16, s52, v16")
    A("v_lshlrev_b32 v18, 4, v18")
    A("v_lshl_add_u32 v1, v16, 8, v18")
    A("v_xor_b32 v2, 16, v1")
    A("v_add_u32 v3, 73728, v1")
    A("v_add_u32 v4, 73728, v2")
    A("v_add_u32 v5, 147456, v1")
    A("v_add_u32 v6, 147456, v2")
    A("v_lshlrev_b32 v17, 4, v17")
    A("v_lshl_add_u32 v0, v16, 10, v17")
    A("s_lshl_b32 s66, s77, 16")
    A("s_lshl_b32 s52, s78, 7")
    A("s_add_u32 s66, s66, s52")
    A("s_waitcnt vmcnt(0) lgkmcnt(0)")
    A.lg = []
    A("s_barrier")
    stamp(29)
    R0 = 64
    plist = [(1, 0), (1, 24576), (1, 49152), (3, 0), (3, 24576), (3, 40960), (3, 57344), (5, 0)]
    for p, (areg, off) in enumerate(plist):
        for c in range(2):
            A.lds("ds_read_b128 %s, v%d offset:%d" % (vr(R0 + p * 8 + c * 4, 4), areg + c, off), ("r", p))
    for p in (1, 2, 3, 5, 6, 7):
        A.wait(lg={("r", p)})
        b = R0 + (p // 4) * 32
        for j in range(4):
            A("v_pk_add_f32 %s, %s, %s" % (vr(b + 2 * j, 2), vr(b + 2 * j, 2), vr(R0 + p * 8 + 2 * j, 2)))
        if p == 3:
            for j in range(8):
                A("v_mul_f32 v%d, v%d, v11" % (R0 + j, R0 + j))
    for j in range(8):
        A("v_fmac_f32 v%d, v%d, v10" % (R0 + j, R0 + 32 + j))
    for j in range(4):
        A("v_cvt_pk_bf16_f32 v%d, v%d, v%d" % (R0 + 8 + j, R0 + 2 * j, R0 + 2 * j + 1))
    A.vmem("buffer_store_dwordx4 %s, v0, %s, s66 offen %s" % (vr(R0 + 8, 4), S(SOUT), opt.opol))
    mark("hop -")
    mark("al 0")
    if opt.stamps:
        A.wait(vm='all')
        stamp(9)
        A("v_mbcnt_lo_u32_b32 v1, -1, 0")
        A("v_mbcnt_hi_u32_b32 v1, -1, v1")
        A("v_lshlrev_b32 v1, 2, v1")
        A("s_lshl3_add_u32 s3, s2, s23")
        A("s_lshl_b32 s3, s3, 8")
        A("s_add_u32 s3, s3, 0x%x" % ST_OFF)
        A("buffer_store_dword v15, v1, %s, s3 offen" % S(SWS))
    A.label("L_END")
    A("s_endpgm")

    mark("p2 64")
    A.label("L_COMPUTE")
    A.vm = []; A.lg = []
    A("v_and_b32 v8, 31, v0")
    A("v_lshrrev_b32 v9, 5, v0")
    A("v_bfe_u32 v10, v0, 1, 3")
    A("v_xor_b32 v10, v10, v9")
    A("v_lshlrev_b32 v10, 4, v10")
    A("v_lshl_add_u32 v10, v8, 7, v10")
    A("s_mul_i32 s52, s22, 24576")
    A("v_add_u32 v1, s52, v10")
    A("v_xor_b32 v2, 32, v1")
    A("v_xor_b32 v3, 64, v1")
    A("v_xor_b32 v4, 96, v1")
    A("v_bfe_u32 v10, v0, 2, 2")
    A("v_and_b32 v11, 3, v0")
    A("v_bfe_u32 v12, v0, 4, 1")
    A("v_lshrrev_b32 v13, 1, v11")
    A("v_lshl_add_u32 v13, v12, 1, v13")
    A("v_bfe_u32 v14, v0, 3, 1")
    A("v_lshlrev_b32 v14, 2, v14")
    A("v_xor_b32 v13, v13, v14")
    A("v_lshlrev_b32 v13, 4, v13")
    A("v_and_b32 v14, 1, v11")
    A("v_lshl_add_u32 v13, v14, 3, v13")
    A("v_lshl_add_u32 v13, v10, 7, v13")
    A("v_lshl_add_u32 v13, v9, 10, v13")
    A("v_add_u32 v5, 0x%x, v13" % WB)
    A("v_xor_b32 v6, 64, v5")
    A("v_lshlrev_b32 v13, 3, v11")
    A("v_lshl_add_u32 v13, v12, 5, v13")
    A("v_lshl_add_u32 v13, v10, 6, v13")
    A("v_lshl_add_u32 v13, v9, 9, v13")
    A("v_add_u32 v7, 0x%x, v13" % (WB + 16384))
    A("v_lshlrev_b32 v8, 4, v0")
    for v in list(range(VX, VKV + 1)) + [145]: A("v_mov_b32 v%d, 0" % v)
    A("s_waitcnt lgkmcnt(0)")
    srds_first()
    srds_rest()
    if opt.stamps and not opt.st0: stamp(0)
    A("s_or_b32 s75, s20, s22")
    A("s_cmp_lg_u32 s75, 0")
    A("s_cbranch_scc1 L_NOZERO")
    for i in range(4): A("v_mov_b32 v%d, 0" % (16 + i))
    A("s_lshl_b32 s53, s21, 11")
    A("s_add_u32 s53, s53, 0x%x" % KVT_OFF)
    A("buffer_store_dwordx4 v[16:19], v8, %s, s53 offen sc0 sc1" % S(SWS))
    A("buffer_store_dwordx4 v[16:19], v8, %s, s53 offen offset:1024 sc0 sc1" % S(SWS))
    A.label("L_NOZERO")
    gate_loads()
    for part in range(3):
        if PFS[part] == -2: prefetch(part, 56 + part, 88)
    hop_run(0)
    stamp(13)
    A("s_lshl_b32 s54, s20, 3")
    A("s_lshl_b32 s55, s22, 1")
    A("s_add_u32 s54, s54, s55")
    A("s_mul_i32 s60, s54, 114688")
    A("s_lshl_b32 s56, s21, 12")
    A("s_add_u32 s60, s60, s56")
    A("s_add_u32 s61, s60, 114688")
    A("s_lshl_b32 s62, s54, 15")
    A("s_sub_u32 s56, s21, 28")
    A("s_lshl_b32 s56, s56, 13")
    A("s_add_u32 s62, s62, s56")
    A("s_add_u32 s62, s62, 0x%x" % Q_OFF)
    A("s_add_u32 s63, s62, 4096")
    A("s_add_u32 s64, s62, 32768")
    A("s_add_u32 s65, s64, 4096")
    A("s_lshl2_add_u32 s66, s20, s22")
    A("s_lshl_b32 s66, s66, 11")
    A("s_lshl2_add_u32 s66, s21, s66")
    A("s_add_u32 s66, s66, 0x%x" % (KVT_OFF + HF))
    A("s_lshl_b32 s54, s22, 11")
    A("s_add_u32 s54, s54, 0x%x" % PB)
    A("v_add_u32 v9, s54, v8")
    for i in range(4): A("v_mov_b32 v%d, 0x3f803f80" % (ONES + i))
    A("v_mov_b32 v11, 1")
    A("s_mov_b32 s67, 0x%x" % LOG2E)
    A("s_mov_b32 s68, 0x358637bd")
    A("s_mov_b32 s69, 0xffff0000")
    A("s_movk_i32 s70, 8192"); A("s_movk_i32 s71, -16384"); A("s_movk_i32 s72, 20480"); A("s_mov_b32 s73, -40960")
    A("s_mov_b32 s59, 0"); A("s_mov_b32 s74, 7")
    A("s_and_b32 s53, s77, 3")
    A("s_lshl1_add_u32 s56, s53, s78")
    for h in range(8):
        A("s_add_u32 s57, s56, %d" % h)
        A("s_and_b32 s57, s57, 7")
        A("s_lshl_b32 s%d, s57, 10" % (8 + h))

    ACC = 96
    def acc(mt, t): return ACC + (mt * 5 + t) * 16
    FR = [16, 44]
    def xf(st, mt): return FR[st] + mt * 4
    def wf(st, t): return FR[st] + 8 + t * 4
    def xread(ks, mt, dst): return "ds_read_b128 %s, v%d offset:%d" % (vr(dst, 4), 1 + ks, mt * 4096)
    def wread(ks, t, rd, dst):
        if t < 4: off = ks * 2048 + rd * 512 + (8192 if t >= 2 else 0); a = 5 + (t & 1)
        else: off = ks * 1024 + rd * 256; a = 7
        return "ds_read_b64_tr_b16 %s, v%d offset:%d" % (vr(dst + 2 * rd, 2), a, off)
    def reads_for(ks):
        st = ks % 2
        out = []
        def xr(mt): out.append((xread(ks, mt, xf(st, mt)), ("x", ks, mt)))
        def wr(t):
            for rd in range(2): out.append((wread(ks, t, rd, wf(st, t)), ("w", ks, t)))
        xr(0); wr(0); xr(1); wr(1); wr(2); wr(3); wr(4)
        return out
    def mfma(mt, t, xreg, wreg_, zero=False):
        c = "0" if zero else vr(acc(mt, t), 16)
        if t < 4: return "v_mfma_f32_32x32x16_bf16 %s, %s, %s, %s" % (vr(acc(mt, t), 16), vr(wreg_, 4), vr(xreg, 4), c)
        return "v_mfma_f32_32x32x16_bf16 %s, %s, %s, %s" % (vr(acc(mt, t), 16), vr(xreg, 4), vr(wreg_, 4), c)
    def kstep(ks, zero=False):
        st = ks % 2
        nxt = reads_for((ks + 1) % 4)
        order = [(mt, t) for t in range(5) for mt in range(2)]
        extra = []
        if ks == 2:
            extra = ["v_add_u32 v%d, s56, v%d" % (v, v) for v in (1, 2, 3, 4)] + ["v_add_u32 v%d, s57, v%d" % (v, v) for v in (5, 6, 7)] + ["s_sub_u32 s74, s74, 1"]
        if ks == 1:
            extra = ["s_add_u32 s59, s59, 1", "s_cmp_eq_u32 s59, 3", "s_cselect_b32 s59, 0, s59", "s_cselect_b32 s56, s71, s70", "s_cselect_b32 s57, s73, s72", "s_nop 0"]
        for i, (mt, t) in enumerate(order):
            if ks == 3 and i == 0: A.wait(lg='all')
            elif opt.wpol == 0: A.wait(lg={("x", ks, mt), ("w", ks, t)})
            elif opt.wpol == 1:
                if i == 0: A.wait(lg='all')
            else:
                if i == 0: A.wait(lg={("w", ks, 1)})
                if i == 4: A.wait(lg={("w", ks, 4)})
            A(mfma(mt, t, xf(st, mt), wf(st, t), zero))
            if ks == 3 and i == 0: A("s_barrier")
            k = 0
            while nxt and k < 2:
                s_, tg = nxt.pop(0); A.lds(s_, tg); k += 1
            if not k:
                for _ in range(2):
                    if extra: A(extra.pop(0))
        assert not extra
    A.wait(vm={"g"})
    A("s_cmp_lg_u32 s75, 0")
    A("s_cbranch_scc1 L_NOFLAG")
    A("s_lshl_b32 s52, s21, 2")
    A("buffer_store_dword v11, off, %s, s52 sc0 sc1" % S(SDBG))
    A.label("L_NOFLAG")
    gate_compute()
    for part in range(3):
        if PFS[part] == -1: prefetch(part, 56 + part, 88)
    stamp(11)
    A("s_barrier")
    stamp(1)
    mark("al 2")
    mark("hop 0 -1")
    for (s_, tg) in reads_for(0): A.lds(s_, tg)
    kstep(0, True)
    st_ks1 = list(A.lg)
    A("s_branch L_KS1")
    mark("p2 %d" % opt.loopal)
    A.label("L_LOOP")
    A.lg = [tg for (_, tg) in reads_for(0)]
    kstep(0)
    assert A.lg == st_ks1, (A.lg, st_ks1)
    mark("p2 8")
    A.label("L_KS1")
    kstep(1); kstep(2); kstep(3)
    assert A.lg == [tg for (_, tg) in reads_for(0)], A.lg
    A("s_cmp_lg_u32 s74, 0")
    A("s_cbranch_scc1 L_LOOP")
    mark("hop 0 1")
    stamp(14)
    if opt.stamps: pass
    XR = {0: 16, 1: 44, 2: 52, 3: 60}
    WR = {(0, t): 24 + 4 * t for t in range(5)}
    M = []
    M += [(0, 0, 4), (0, 1, 4), (0, 0, 0), (0, 1, 0)]
    for ks in (1, 2, 3): M += [(ks, 0, 4), (ks, 1, 4)]
    KVDONE = len(M) - 1
    M += [(0, 0, 2), (0, 1, 2)]
    for ks in (1, 2, 3): M += [(ks, 0, 0), (ks, 1, 0), (ks, 0, 2), (ks, 1, 2)]
    PB_END = len(M) - 1
    for ks in (0, 1, 2, 3): M += [(ks, 0, 1), (ks, 1, 1), (ks, 0, 3), (ks, 1, 3)]
    last_use = {}
    for k, (ks, mt, t) in enumerate(M): last_use[(ks, t)] = k
    R = []
    ring = [(92, -1), (68, -1)]
    seen = set()
    for k, (ks, mt, t) in enumerate(M):
        if ks and ("x", ks) not in seen:
            seen.add(("x", ks))
            for m2 in range(2): R.append((xread(ks, m2, XR[ks] + 4 * m2), ("x", ks, m2), -1))
        if (ks, t) not in WR:
            ring.sort(key=lambda x: x[1])
            reg, fr = ring.pop(0)
            assert fr < k
            WR[(ks, t)] = reg
            for rd in range(2): R.append((wread(ks, t, rd, reg), ("w", ks, t), fr))
        if last_use[(ks, t)] == k: ring.append((WR[(ks, t)], k))
    a0, a1 = acc(0, 4), acc(1, 4)
    def kv_fill():
        F = []
        for r in range(0, 16, 2):
            t0, t1 = TT + (r % 4), TT + 1 + (r % 4)
            F += [("v_permlane16_swap_b32 v%d, v%d" % (a0 + r, a1 + r), 4), ("v_permlane16_swap_b32 v%d, v%d" % (a0 + r + 1, a1 + r + 1), 4)]
            F += [("v_mul_f32 v%d, s67, v%d" % (t0, a0 + r), 4), ("v_mul_f32 v%d, s67, v%d" % (t1, a0 + r + 1), 4)]
            F += [("v_exp_f32_e64 v%d, v%d clamp" % (t0, t0), 8), ("v_exp_f32_e64 v%d, v%d clamp" % (t1, t1), 8)]
            F += [("v_max_f32 v%d, s68, v%d" % (a0 + r, a0 + r), 4), ("v_max_f32 v%d, s68, v%d" % (a0 + r + 1, a0 + r + 1), 4)]
            F += [("v_cvt_pk_bf16_f32 v%d, v%d, v%d" % (a1 + r // 2, a1 + r, a1 + r + 1), 4)]
            F += [("v_add_f32 v%d, v%d, v%d" % (t0, t0, a0 + r), 4), ("v_add_f32 v%d, v%d, v%d" % (t1, t1, a0 + r + 1), 4)]
            F += [("v_cvt_pk_bf16_f32 v%d, v%d, v%d" % (a0 + r // 2, t0, t1), 4)]
            if r in (8, 14):
                i = 0 if r == 8 else 1
                if r == 14: F += [("s_nop 1", 8)]
                F += [("v_mfma_f32_16x16x32_bf16 %s, %s, %s, %s" % (vr(DKV, 4), vr(a0 + 4 * i, 4), vr(a1 + 4 * i, 4), vr(DKV, 4) if i else "0"), 16)]
                F += [("v_mfma_f32_16x16x32_bf16 %s, %s, %s, %s" % (vr(DZ, 4), vr(a0 + 4 * i, 4), vr(ONES, 4), vr(DZ, 4) if i else "0"), 16)]
        return F
    def kv_out():
        A.lds("ds_write_b128 v9, %s" % vr(DKV, 4), "kvp")
        A.lds("ds_write_b128 v9, %s offset:1024" % vr(DZ, 4), "kvp")
    def h_epi(tp, packed):
        F = []
        for mt in range(2):
            g, u = acc(mt, tp), acc(mt, 2 + tp)
            for half in range(2):
                for i in range(4 * half, 4 * half + 4):
                    if packed: F.append(("v_pk_mul_f32 %s, %s, %s" % (vr(g + 2 * i, 2), vr(g + 2 * i, 2), vr(u + 2 * i, 2)), 8))
                    else:
                        F += [("v_mul_f32 v%d, v%d, v%d" % (g + 2 * i + x, g + 2 * i + x, u + 2 * i + x), 4) for x in range(2)]
                for i in range(4 * half, 4 * half + 4):
                    F.append(("v_cvt_pk_bf16_f32 v%d, v%d, v%d" % (g + i, g + 2 * i, g + 2 * i + 1), 4))
                F.append(("buffer_store_dwordx4 %s, v8, %s, s%d offen offset:%d sc1" % (vr(g + 4 * half, 4), S(SWS), 60 + mt, (2 * tp + half) * 1024), 8))
        return F
    def q_epi(tp, packed):
        F = []
        for t in (tp, tp + 2):
            for mt in range(2):
                g = acc(mt, t)
                for half in range(2):
                    for i in range(4 * half, 4 * half + 4):
                        F.append(("v_cvt_pk_bf16_f32 v%d, v%d, v%d" % (g + i, g + 2 * i, g + 2 * i + 1), 4))
                    F.append(("buffer_store_dwordx4 %s, v8, %s, s%d offen offset:%d sc1" % (vr(g + 4 * half, 4), S(SWS), 62 + mt * 2 + (t >> 1), ((2 * t + half) % 4) * 1024), 8))
        return F
    def run(k0, k1, F, fstart, R, budget, hooks={}):
        for k in range(k0, k1):
            ks, mt, t = M[k]
            A.wait(lg={("x", ks, mt), ("w", ks, t)})
            A(mfma(mt, t, XR[ks] + 4 * mt, WR[(ks, t)]))
            if k in hooks: hooks[k]()
            b = budget; n = 0
            while R and R[0][2] <= k and n < 3:
                s_, tg, _ = R.pop(0); A.lds(s_, tg); n += 1; b -= 4
            if k >= fstart:
                while F and b > 0:
                    s_, c = F.pop(0); A(s_); b -= c
    F = kv_fill()
    nF = sum(c for _, c in F)
    run(0, PB_END + 1, F, KVDONE + 1, R, opt.kvb)
    for s_, c in F: A(s_)
    stamp(12)
    lg_save = list(A.lg); R_save = list(R)
    def tail(epi, lbl):
        A.lg = list(lg_save); R2 = list(R_save)
        def b8():
            kv_out()
        def b8b():
            A.wait(lg={"kvp"})
            A("s_waitcnt vmcnt(0)")
            A("s_barrier")
        lastw = PB_END + opt.b9
        def b9():
            assert not R2
            A.wait(lg='all')
            A("s_barrier")
        F2 = epi(0, False)
        run(PB_END + 1, len(M), F2, PB_END + 3, R2, opt.hb, {PB_END + 1: b8, PB_END + 3: b8b, lastw: b9})
        for s_, c in F2: A(s_)
        stamp(2)
        for s_, c in epi(1, True): A(s_)
    A("s_cmp_ge_u32 s21, 28")
    A("s_cbranch_scc1 L_QEPI")
    tail(h_epi, "h")
    A("s_branch L_ATT")
    mark("p2 8")
    A.label("L_QEPI")
    A("s_nop 7")
    A("s_nop 0")
    tail(q_epi, "q")
    A.label("L_ATT")
    mark("al 1")
    stamp(3)
    if opt.aprio: A("s_setprio %d" % opt.aprio)
    w2_voffs()
    A("s_lshl_b32 s62, s22, 14")
    A("s_add_u32 s62, s62, 0x%x" % WB)
    A("s_lshl_b32 s64, s22, 17")
    A.vm = []
    def wo_loads(h):
        A("s_add_u32 m0, s62, %d" % (h * 2048))
        A("s_lshl4_add_u32 s52, s%d, s64" % (8 + h))
        A.vmem("buffer_load_dwordx4 v6, %s, s52 offen lds" % S(SWO), ("w", h))
        A.vmem("buffer_load_dwordx4 v7, %s, s52 offen offset:1024 lds" % S(SWO), ("w", h))
    for h in range(opt.wopre): wo_loads(h)
    A("s_lshl_b32 s52, s77, 16")
    A("s_lshl_b32 s53, s22, 13")
    A("s_add_u32 s52, s52, s53")
    A("s_add_u32 s52, s52, 0x%x" % Q_OFF)
    A("v_add_u32 v1, s52, v8")
    A("v_add_u32 v2, 0x8000, v1")
    A("s_waitcnt vmcnt(%d)" % (2 * opt.wopre))
    A.vmem("buffer_store_dword v11, off, %s, s66 sc1" % S(SWS))
    stamp(5)
    mark("hop %d 3" % opt.hga)
    for h in range(opt.wopre, 8): wo_loads(h)
    tr_addrs(62)
    hflag_addr()
    A("v_and_b32 v14, 31, v0")
    A("v_lshrrev_b32 v13, 5, v0")
    A("v_min_u32 v5, 16, v14")
    A("v_lshlrev_b32 v5, 4, v5")
    A("v_lshl_add_u32 v5, v13, 9, v5")
    A("s_lshl_b32 s52, s22, 14")
    A("s_add_u32 s52, s52, 0x%x" % KVT_OFF)
    A("v_add_u32 v5, s52, v5")
    A("v_lshrrev_b32 v12, 3, v0")
    A("v_and_b32 v13, 7, v0")
    A("v_lshlrev_b32 v13, 4, v13")
    A("v_lshl_add_u32 v12, v12, 11, v13")
    A("s_add_u32 s63, s52, %d" % KVF)
    A("s_add_u32 s52, s22, 28")
    A("s_lshl_b32 s60, 1, s52")
    A("s_and_b32 s53, s77, 3")
    A("s_lshl3_add_u32 s53, s53, s23")
    A("s_lshl_b32 s53, 1, s53")
    A("s_or_b32 s60, s60, s53")
    poll_h("L_APOLL", 60)
    stamp(6)
    QR = 64; KVR = 128; OD = 32
    def qr(h, mt): return QR + 8 * h + 4 * mt
    for h in range(8):
        A.vmem("buffer_load_dwordx4 %s, v1, %s, s%d offen sc1" % (vr(qr(h, 0), 4), S(SWS), 8 + h), ("q", h, 0))
        A.vmem("buffer_load_dwordx4 %s, v2, %s, s%d offen sc1" % (vr(qr(h, 1), 4), S(SWS), 8 + h), ("q", h, 1))
    g_load(10)
    V = A
    def P(h):
        for mt in range(2):
            A.wait(vm={("q", h, mt)})
            q = qr(h, mt)
            for j in range(0, 4, 2):
                for jj in range(2):
                    t = 24 + 2 * jj
                    V("v_lshlrev_b32 v%d, 16, v%d" % (t, q + j + jj))
                    V("v_and_b32 v%d, s69, v%d" % (t + 1, q + j + jj))
                for x in range(4):
                    V("v_mul_f32 v%d, s67, v%d" % (32 + x, 24 + x))
                for x in range(4):
                    V("v_exp_f32_e64 v%d, v%d clamp" % (32 + x, 32 + x))
                for x in range(4):
                    V("v_max_f32 v%d, s68, v%d" % (24 + x, 24 + x))
                for x in range(4):
                    V("v_add_f32 v%d, v%d, v%d" % (24 + x, 24 + x, 32 + x))
                for jj in range(2):
                    t = 24 + 2 * jj
                    V("v_cvt_pk_bf16_f32 v%d, v%d, v%d" % (q + j + jj, t, t + 1))
    def C(h):
        A.wait(vm={("kv", h)})
        for j in range(4):
            V("v_cvt_pk_bf16_f32 v%d, v%d, v%d" % (KVR + 8 * h + j, KVR + 8 * h + 2 * j, KVR + 8 * h + 2 * j + 1))
    def Mm(h):
        for mt in range(2):
            A("v_mfma_f32_32x32x16_bf16 %s, %s, %s, 0" % (vr(OD + 16 * mt, 16), vr(KVR + 8 * h, 4), vr(qr(h, mt), 4)))
    def N(h):
        V("v_add_f32 v24, s68, v%d" % (OD + 8))
        V("v_add_f32 v25, s68, v%d" % (OD + 24))
        V("v_rcp_f32 v24, v24")
        V("v_rcp_f32 v25, v25")
        for mt in range(2):
            d = OD + 16 * mt
            for j in range(8):
                V("v_mul_f32 v%d, v%d, v%d" % (d + j, d + j, 24 + mt))
            for j in range(4):
                V("v_cvt_pk_bf16_f32 v%d, v%d, v%d" % (qr(h, mt) + j, d + 2 * j, d + 2 * j + 1))
    def Rr(h):
        A.wait(vm={("w", h)})
        tr_reads(h * 2048, 16, ("w", h))
    def W(h):
        for t in range(2):
            for mt in range(2):
                A.wait(lg={("w", h, t)})
                d = vr(acc2(t, mt), 16)
                A("v_mfma_f32_32x32x16_bf16 %s, %s, %s, %s" % (d, vr(16 + 4 * t, 4), vr(qr(h, mt), 4), "0" if h == 0 else d))
    NP = opt.npre
    for h in range(NP): P(h)
    A("s_movk_i32 s57, 0x%x" % SPIN)
    A.label("L_KPOLL")
    A("buffer_load_dwordx4 v[36:39], v12, %s, s63 offen sc1" % S(SWS))
    A("s_waitcnt vmcnt(0)")
    A("v_and_b32 v36, v36, v37")
    A("v_and_b32 v38, v38, v39")
    A("v_and_b32 v36, v36, v38")
    A("v_cmp_ne_u32 vcc, 0, v36")
    A("s_cmp_eq_u64 vcc, -1")
    A("s_cbranch_scc1 L_KPOLL_OK")
    if opt.psleep: A("s_sleep %d" % opt.psleep)
    A("s_sub_u32 s57, s57, 1")
    A("s_cmp_lg_u32 s57, 0")
    A("s_cbranch_scc1 L_KPOLL")
    A.label("L_KPOLL_OK")
    A.vm = []
    stamp(7)
    for h in range(8):
        A("s_lshl_b32 s52, s%d, 1" % (8 + h))
        A.vmem("buffer_load_dwordx4 %s, v5, %s, s52 offen sc1" % (vr(KVR + 8 * h, 4), S(SWS)), ("kv", h))
        A.vmem("buffer_load_dwordx4 %s, v5, %s, s52 offen offset:1024 sc1" % (vr(KVR + 8 * h + 4, 4), S(SWS)), ("kv", h))
    for h in range(NP, 8): P(h)
    C(0); Mm(0)
    for h in range(1, 8):
        C(h); Rr(h - 1); N(h - 1); Mm(h); W(h - 1)
    Rr(7); N(7); W(7)
    stamp(8)
    for s_ in write_partial(62, 24): A.lds(s_)
    A("s_branch L_RED")
    mark("hop -")
    lines = hz.fix(A.lines, True)
    lines, hops, size = post.process(lines, opt.hop, opt.align)
    print("code bytes", size, "hops", hops)
    return "\n".join(lines) + "\n"

def main():
    ap = argparse.ArgumentParser()
    ap.add_argument("-o", default="out.s")
    ap.add_argument("--stamps", action="store_true")
    ap.add_argument("--st0", type=int, default=1)
    ap.add_argument("--k1win", type=int, default=4)
    ap.add_argument("--cuts", type=str, default="9,13,13,13,13,13,13")
    ap.add_argument("--gst", type=int, default=3)
    ap.add_argument("--pf", type=int, default=0)
    ap.add_argument("--pfs", type=str, default="3,4,5")
    ap.add_argument("--sched", type=str, default="i2/i0/i1/p0 i2 p1 i0 f p3 i2 p4 i0")
    ap.add_argument("--pfpol", type=str, default="")
    ap.add_argument("--opol", type=str, default="")
    ap.add_argument("--psleep", type=int, default=1)
    ap.add_argument("--aprio", type=int, default=0)
    ap.add_argument("--npre", type=int, default=4)
    ap.add_argument("--wopre", type=int, default=0)
    ap.add_argument("--wpol", type=int, default=2)
    ap.add_argument("--kvb", type=int, default=32)
    ap.add_argument("--hb", type=int, default=24)
    ap.add_argument("--hop", type=int, default=0)
    ap.add_argument("--b9", type=int, default=7)
    ap.add_argument("--hops", type=int, default=-1)
    ap.add_argument("--hgf", type=int, default=0)
    ap.add_argument("--hga", type=int, default=0)
    ap.add_argument("--align", type=int, default=0)
    ap.add_argument("--loopal", type=int, default=64)
    opt = ap.parse_args()
    out = HEADER
    out += "; @launch grid=(256,1,1) block=(512,1,1) lds=%d\n" % LDS
    out += '.amdgcn_target "amdgcn-amd-amdhsa--gfx950"\n.text\n'
    out += fused(opt)
    out += '.section .rodata,"a"\n'
    out += kd(NAME + "_kernel", 256, 102, 256)
    open(opt.o, "w").write(out)

if __name__ == "__main__":
    main()
```

```python
import sys, argparse
from gen import Asm, vr, sr, kd, NAME, HEADER, LOG2E
import hz, post

H_OFF   = 0x0
Q_OFF   = 0x700000
KVT_OFF = 0x900000
KVF     = 384
HF      = 896
G_OFF   = 0x910000
ST_OFF  = 0x1000000
WS_SIZE = 0x2000000
WB = 98304
LDS = 163840
PB = WB + 2 * 20480
SPIN = 0x7fff
SX, SLO, SHI, SKV, SWS, SDBG, SGW, SWD, SOUT, SWO = 24, 28, 32, 36, 40, 44, 48, 88, 92, 96
def S(d): return "s[%d:%d]" % (d, d + 3)

def fused(opt):
    A = Asm()
    def stamp(idx):
        if not opt.stamps: return
        A("s_memrealtime s[100:101]")
        A("s_waitcnt lgkmcnt(0)")
        A.lg = []
        A("v_writelane_b32 v15, s100, %d" % idx)
        A("s_nop 0")
    def mark(s): A.raw(";@" + s)
    KN = NAME + "_kernel"
    A.raw(".globl %s\n.p2align 8\n.type %s,@function\n%s:" % (KN, KN, KN))
    A("s_cmp_ge_u32 s2, 256")
    A("s_cbranch_scc1 L_END")
    A("s_load_dwordx4 s[4:7], s[0:1], 0")
    A("s_load_dwordx8 s[8:15], s[0:1], 32")
    A("s_load_dwordx4 s[16:19], s[0:1], 72")
    A("s_load_dwordx2 s[84:85], s[0:1], 64")
    A("s_load_dwordx2 s[86:87], s[0:1], 16")
    if opt.stamps:
        A("v_mov_b32 v15, 0")
        if opt.st0: stamp(0)
    A("v_lshrrev_b32 v1, 6, v0")
    A("v_and_b32 v0, 63, v0")
    A("s_and_b32 s20, s2, 7")
    A("v_readfirstlane_b32 s23, v1")
    A("s_lshr_b32 s21, s2, 3")
    A("s_and_b32 s53, s21, 3")
    A("s_lshr_b32 s78, s21, 2")
    A("s_and_b32 s52, s20, 1")
    A("s_lshr_b32 s54, s20, 1")
    A("s_lshl2_add_u32 s77, s52, s54")
    A("s_lshl2_add_u32 s77, s77, s53")
    A("s_lshl2_add_u32 s20, s52, s53")
    A("s_lshl3_add_u32 s21, s54, s78")
    A("s_and_b32 s22, s23, 3")
    A("s_mov_b32 s56, 0x%x" % (512 * 1792 * 2))
    A("s_mov_b32 s57, 0x%x" % (512 * 1536 * 2))
    A("s_cmp_lt_u32 s21, 28")
    A("s_cselect_b32 s%d, s56, s57" % (SLO + 2))
    A("s_cselect_b32 s%d, s56, s57" % (SHI + 2))
    A("s_movk_i32 s56, 3584")
    A("s_movk_i32 s55, 3072")
    A("s_cselect_b32 s58, s56, s55")
    A("s_mov_b32 s%d, s57" % (SKV + 2))
    A("s_mov_b32 s%d, 0x%x" % (SX + 2, 2048 * 512 * 2))
    for d in (SLO, SHI, SKV, SX): A("s_mov_b32 s%d, 0x20000" % (d + 3))
    def srd_base(d, lo):
        A("s_mov_b32 s%d, s%d" % (d, lo))
        A("s_and_b32 s%d, s%d, 0xffff" % (d + 1, lo + 1))
    def srds_first():
        A("s_cmp_lt_u32 s21, 28")
        A("s_cselect_b32 s%d, s8, s6" % SLO)
        A("s_cselect_b32 s%d, s9, s7" % (SLO + 1))
        A("s_cselect_b32 s%d, s10, s6" % SHI)
        A("s_cselect_b32 s%d, s11, s7" % (SHI + 1))
        A("s_and_b32 s%d, s%d, 0xffff" % (SLO + 1, SLO + 1))
        A("s_and_b32 s%d, s%d, 0xffff" % (SHI + 1, SHI + 1))
        srd_base(SKV, 6)
        srd_base(SX, 4)
    def srds_rest():
        for d, lo, size in ((SWS, 18, WS_SIZE), (SDBG, 16, 256), (SGW, 14, 1024), (SWD, 12, 1792 * 512 * 2),
                            (SOUT, 84, 2048 * 512 * 2), (SWO, 86, 512 * 512 * 2)):
            srd_base(d, lo)
            A("s_mov_b32 s%d, 0x%x" % (d + 2, size))
            A("s_mov_b32 s%d, 0x20000" % (d + 3))
    A("s_cmp_lt_u32 s23, 4")
    A("s_cbranch_scc1 L_COMPUTE")

    ACC2 = 192
    DKV, DZ, ONES, TT = 72, 76, 80, 84
    def acc2(t, mt): return ACC2 + (t * 2 + mt) * 16

    def w2_voffs():
        A("v_lshrrev_b32 v4, 3, v0")
        A("v_and_b32 v5, 7, v0")
        A("v_lshlrev_b32 v5, 4, v5")
        A("v_lshl_add_u32 v5, v4, 11, v5")
        A("s_lshl_b32 s52, s78, 7")
        A("v_add_u32 v6, s52, v5")
        A("v_xor_b32 v7, 64, v6")
    def tr_addrs(base_s):
        A("v_bfe_u32 v8, v0, 1, 1")
        A("v_bfe_u32 v4, v0, 4, 1")
        A("v_lshl_add_u32 v8, v4, 1, v8")
        A("v_bfe_u32 v4, v0, 2, 1")
        A("v_lshl_add_u32 v8, v4, 2, v8")
        A("v_lshlrev_b32 v8, 4, v8")
        A("v_lshl_add_u32 v8, v4, 10, v8")
        A("v_and_b32 v4, 1, v0")
        A("v_lshl_add_u32 v8, v4, 3, v8")
        A("v_bfe_u32 v4, v0, 3, 1")
        A("v_lshl_add_u32 v8, v4, 7, v8")
        A("v_lshrrev_b32 v4, 5, v0")
        A("v_lshl_add_u32 v8, v4, 8, v8")
        A("v_add_u32 v8, s%d, v8" % base_s)
        A("v_xor_b32 v9, 64, v8")
    def tr_reads(off, dst, tag):
        for t in range(2):
            for rd in range(2):
                A.lds("ds_read_b64_tr_b16 %s, v%d offset:%d" % (vr(dst + 4 * t + 2 * rd, 2), 8 + t, off + rd * 512), tag + (t,))
    def poll_h(lbl, mask_s):
        A("s_movk_i32 s57, 0x%x" % SPIN)
        A.label(lbl)
        A("buffer_load_dword v4, v3, %s, s83 offen sc1" % S(SWS))
        A("s_waitcnt vmcnt(0)")
        A("v_cmp_ne_u32 vcc, 0, v4")
        A("s_and_b32 s52, vcc_lo, s%d" % mask_s)
        A("s_cmp_eq_u32 s52, s%d" % mask_s)
        A("s_cbranch_scc1 %s_OK" % lbl)
        if opt.psleep: A("s_sleep %d" % opt.psleep)
        A("s_sub_u32 s57, s57, 1")
        A("s_cmp_lg_u32 s57, 0")
        A("s_cbranch_scc1 %s" % lbl)
        A.label(lbl + "_OK")
        A.vm = []
    def hflag_addr():
        A("v_and_b32 v3, 31, v0")
        A("v_lshlrev_b32 v3, 2, v3")
        A("s_lshl_b32 s83, s77, 11")
        A("s_add_u32 s83, s83, 0x%x" % (KVT_OFF + HF))
    def g_load(dst):
        A("v_lshrrev_b32 v4, 3, v0")
        A("v_lshlrev_b32 v4, 3, v4")
        A("s_lshl_b32 s52, s77, 9")
        A("s_lshl_b32 s53, s23, 6")
        A("s_add_u32 s52, s52, s53")
        A("s_add_u32 s52, s52, 0x%x" % G_OFF)
        A.vmem("buffer_load_dwordx2 %s, v4, %s, s52 offen sc1" % (vr(dst, 2), S(SWS)), "g")
    def write_partial(base_s, tmp):
        A("v_and_b32 v%d, 31, v0" % tmp)
        A("v_lshrrev_b32 v%d, 5, v0" % (tmp + 1))
        A("v_and_b32 v%d, 7, v0" % (tmp + 2))
        A("v_xor_b32 v%d, v%d, v%d" % (tmp + 1, tmp + 1, tmp + 2))
        A("v_lshlrev_b32 v%d, 4, v%d" % (tmp + 1, tmp + 1))
        A("v_lshl_add_u32 v%d, v%d, 8, v%d" % (tmp, tmp, tmp + 1))
        A("v_add_u32 v%d, s%d, v%d" % (tmp, base_s, tmp))
        for g4 in range(1, 4):
            A("v_xor_b32 v%d, %d, v%d" % (tmp + g4, g4 * 32, tmp))
        return [("ds_write_b128 v%d, %s offset:%d" % (tmp + g4, vr(acc2(t, mt) + 4 * g4, 4), mt * 8192 + t * 128))
                for t in range(2) for mt in range(2) for g4 in range(4)]
    def hop_run(g):
        if not opt.hop: return
        A("s_mov_b64 exec, 0")
        for w in range(3):
            A("s_cmp_eq_u32 s22, %d" % w)
            A("s_cbranch_scc1 @ENT%d_%d" % (g, w))
        A("s_branch @ENT%d_3" % g)
        A.label("L_HOPRET%d" % g)
        A("s_mov_b64 exec, -1")

    VX, VW, VKV = 192, 196, 198
    A("v_lshrrev_b32 v2, 3, v0")
    A("v_and_b32 v3, 7, v0")
    A("v_lshrrev_b32 v4, 4, v0")
    A("v_and_b32 v6, 1, v4")
    A("v_lshlrev_b32 v6, 2, v6")
    A("v_xor_b32 v6, v3, v6")
    A("v_lshlrev_b32 v6, 4, v6")
    A("v_mad_u32_u24 v%d, v2, s58, v6" % VW)
    A("s_lshl_b32 s64, s58, 3")
    A("s_sub_u32 s64, s64, 1024")
    A("v_add_u32 v%d, s64, v%d" % (VW + 1, VW))
    A("v_xor_b32 v5, v3, v4")
    A("v_lshlrev_b32 v5, 4, v5")
    A("v_lshl_add_u32 v%d, v2, 10, v5" % VX)
    A("v_xor_b32 v5, 64, v%d" % VX)
    A("v_add_u32 v%d, %d, v5" % (VX + 1, 7168))
    A("v_add_u32 v%d, %d, v%d" % (VX + 2, 2 * 7168, VX))
    A("v_add_u32 v%d, %d, v5" % (VX + 3, 3 * 7168))
    A("v_lshrrev_b32 v2, 2, v0")
    A("v_bfe_u32 v3, v0, 1, 1")
    A("v_and_b32 v4, 1, v0")
    A("v_lshlrev_b32 v4, 4, v4")
    A("v_lshl_add_u32 v4, v3, 10, v4")
    A("v_mad_u32_u24 v%d, v2, s55, v4" % VKV)
    A("s_lshl_b32 s60, s20, 18")
    A("s_lshl_b32 s52, s22, 16")
    A("s_add_u32 s60, s60, s52")
    A("s_lshl_b32 s52, s21, 7")
    A("s_sub_u32 s53, s21, 28")
    A("s_lshl_b32 s53, s53, 8")
    A("s_add_u32 s54, s53, 128")
    A("s_cmp_lt_u32 s21, 28")
    A("s_cselect_b32 s61, s52, s53")
    A("s_cselect_b32 s62, s52, s54")
    A("s_lshl_b32 s52, s22, 4")
    A("s_mul_i32 s53, s52, s58")
    A("s_add_u32 s61, s61, s53")
    A("s_add_u32 s62, s62, s53")
    A("s_mul_i32 s63, s52, s55")
    A("s_lshl_b32 s53, s21, 5")
    A("s_add_u32 s63, s63, s53")
    A("s_add_u32 s63, s63, 1024")
    A("s_lshl_b32 s65, s58, 6")
    A("s_mul_i32 s66, s22, 24576")
    A("s_lshl_b32 s67, s22, 11")
    A("s_add_u32 s67, s67, 0x%x" % WB)
    A("s_lshl_b32 s68, s22, 10")
    A("s_add_u32 s68, s68, 0x%x" % (WB + 16384))
    WIN = opt.k1win
    if WIN == 8: A("s_lshl1_add_u32 s72, s20, s21")
    else: A("s_add_u32 s72, s20, s21")

    def stage_pre(s):
        A("s_add_u32 s76, s72, %d" % s)
        A("s_and_b32 s76, s76, %d" % (WIN - 1))
        if s & ~(WIN - 1): A("s_add_u32 s76, s76, %d" % (s & ~(WIN - 1)))
        A("s_mul_i32 s74, s76, s65")
        A("s_add_u32 s82, s74, s62")
        A("s_add_u32 s74, s74, s61")
        A("s_lshl_b32 s73, s76, 7")
        A("s_add_u32 s73, s73, s60")
        A("s_add_u32 s64, s73, 0x8000")
        A("s_mul_i32 s75, s76, %d" % (64 * 3072))
        A("s_add_u32 s75, s75, s63")
    def stage_ops(s, pre=True):
        slot = s % 3
        tag = ("st", s)
        ops = []
        def ld(m0s, m0i, v, srd_, so, off, first=False):
            def f():
                if first and pre: stage_pre(s)
                if m0s is not None: A("s_add_u32 m0, s%d, %d" % (m0s, m0i))
                A.vmem("buffer_load_dwordx4 v%d, %s, s%d offen%s lds" % (v, S(srd_), so, (" offset:%d" % off) if off else ""), tag)
            f.m0 = (m0s, m0i)
            return f
        ops.append(ld(67, slot * 20480, VW, SLO, 74, 0, True))
        ops.append(ld(None, 0, VW + 1, SLO, 74, 1024))
        ops.append(ld(67, slot * 20480 + 8192, VW, SHI, 82, 0))
        ops.append(ld(None, 0, VW + 1, SHI, 82, 1024))
        ops.append(ld(68, slot * 20480, VKV, SKV, 75, 0))
        for a in range(8):
            ops.append(ld(66 if a % 4 == 0 else None, slot * 8192 + a * 1024, VX + a % 4, SX, 73 if a < 4 else 64, (a % 4) * 1024))
        return ops
    stage_pre(0)
    A("s_waitcnt lgkmcnt(0)")
    srds_first()
    stamp(16)
    for f in stage_ops(0, False): f()
    CUTS = [int(x) for x in opt.cuts.split(",")]
    assert all(c in (0, 2, 4, 5, 9, 13) for c in CUTS)
    pend = stage_ops(1)
    for f in pend[:CUTS[0]]: f()
    pend = pend[CUTS[0]:]
    srds_rest()
    A("v_lshlrev_b32 v14, 4, v0")
    A("s_lshl_b32 s70, s21, 11")
    A("s_add_u32 s70, s70, 0x%x" % KVT_OFF)
    for v in (1, 2, 3, 4, 5, 6, 7, 145): A("v_mov_b32 v%d, 0" % v)
    mark("hop 0 0")

    def gate_loads():
        A("s_lshl_b32 s76, s20, 8")
        A("s_lshl3_add_u32 s76, s21, s76")
        A("s_lshl1_add_u32 s76, s22, s76")
        A("s_lshl_b32 s52, s76, 10")
        A.vmem("buffer_load_dwordx4 v[24:27], v8, %s, 0 offen" % S(SGW), "g")
        A.vmem("buffer_load_dwordx4 v[28:31], v8, %s, s52 offen" % S(SX), "g")
        A.vmem("buffer_load_dwordx4 v[32:35], v8, %s, s52 offen offset:1024" % S(SX), "g")
    def gate_compute():
        A.wait(vm={"g"})
        for i in range(4):
            A("v_lshlrev_b32 v%d, 16, v%d" % (36 + 2 * i, 24 + i))
            A("v_and_b32 v%d, s69, v%d" % (37 + 2 * i, 24 + i))
        for r in range(2):
            for i in range(4):
                A("v_lshlrev_b32 v%d, 16, v%d" % (44 + 2 * i, 28 + 4 * r + i))
                A("v_and_b32 v%d, s69, v%d" % (45 + 2 * i, 28 + 4 * r + i))
            for i in range(4):
                A("v_pk_mul_f32 %s, %s, %s" % (vr(44 + 2 * i, 2), vr(44 + 2 * i, 2), vr(36 + 2 * i, 2)))
            for i in range(4):
                A("v_cvt_pk_bf16_f32 v%d, v%d, v%d" % (44 + i, 44 + 2 * i, 45 + 2 * i))
            for i in range(4):
                A("v_dot2_f32_bf16 v%d, v%d, v%d, %s" % (52 + r, 44 + i, ONES, "0" if i == 0 else "v%d" % (52 + r)))
        A("s_nop 3")
        A("v_permlane32_swap_b32 v52, v53")
        A("s_nop 0")
        A("v_add_f32 v52, v52, v53")
        for m in ("quad_perm:[1,0,3,2]", "quad_perm:[2,3,0,1]", "row_half_mirror", "row_mirror"):
            A("s_nop 1")
            A("v_add_f32_dpp v52, v52, v52 %s row_mask:0xf bank_mask:0xf" % m)
        A("v_mov_b32 v53, v52")
        A("s_nop 1")
        A("v_permlane16_swap_b32 v52, v53")
        A("s_nop 0")
        A("v_add_f32 v52, v52, v53")
        A("v_cvt_pk_bf16_f32 v32, v52, v52")
        A("v_lshlrev_b32 v32, 16, v32")
        A("v_mul_f32 v32, 0xbfb8aa3b, v32")
        A("v_exp_f32 v32, v32")
        A("v_add_f32 v32, 1.0, v32")
        A("v_rcp_f32 v32, v32")
        A("v_cvt_pk_bf16_f32 v32, v32, v32")
        A("v_lshlrev_b32 v32, 16, v32")
        A("v_sub_f32 v33, 1.0, v32")
        A("v_cvt_pk_bf16_f32 v33, v33, v33")
        A("v_lshlrev_b32 v33, 16, v33")
        A("v_lshrrev_b32 v34, 2, v0")
        A("s_lshl_b32 s52, s76, 3")
        A("s_add_u32 s52, s52, 0x%x" % G_OFF)
        A("s_mov_b32 exec_lo, 1")
        A("s_mov_b32 exec_hi, 1")
        A.vmem("buffer_store_dwordx2 v[32:33], v34, %s, s52 offen sc1" % S(SWS), "gst")
        A("s_mov_b64 exec, -1")

    WDR = 16; HR = 144; NH = 6
    def hreg(i, mt): return HR + (i % NH) * 8 + 4 * mt
    gslot = {}
    wreg = {}
    freeregs = [WDR + 8 * i for i in range(16)]
    def wslot(i): return gslot[i // 4] * 8192 + (i % 4) * 2048
    def p2_setup():
        w2_voffs()
        tr_addrs(66)
        A("s_and_b32 s54, s77, 3")
        A("s_mul_i32 s56, s54, 7")
        A("s_mul_i32 s57, s78, 7")
        A("s_lshr_b32 s57, s57, 1")
        A("s_add_u32 s56, s56, s57")
        A("s_sub_u32 s57, s56, 28")
        A("s_cmp_ge_u32 s56, 28")
        A("s_cselect_b32 s56, s57, s56")
        A("s_lshl_b32 s79, s56, 10")
        A("s_mov_b32 s80, s79")
        A("s_mul_i32 s81, s22, %d" % (28 * 16384))
        A("s_movk_i32 s59, 28672")
    def wd_issue(slot):
        grp = len(gslot); gslot[grp] = slot
        for i in range(4 * grp, 4 * grp + 4):
            A("s_add_u32 m0, s66, %d" % wslot(i))
            A("s_lshl4_add_u32 s52, s79, s81")
            A.vmem("buffer_load_dwordx4 v6, %s, s52 offen lds" % S(SWD), ("wd", i))
            A.vmem("buffer_load_dwordx4 v7, %s, s52 offen offset:1024 lds" % S(SWD), ("wd", i))
            A("s_addk_i32 s79, 1024")
            A("s_cmp_eq_u32 s79, s59")
            A("s_cselect_b32 s79, 0, s79")
    def wd_pull(grp):
        for i in range(4 * grp, 4 * grp + 4):
            A.wait(vm={("wd", i)})
            wreg[i] = freeregs.pop(0)
            tr_reads(wslot(i), wreg[i], ("wd", i))
        A.wait(lg='all')
    def kvflag():
        A.wait(vm={"atom"})
        A.vmem("buffer_store_dword v5, off, %s, s71 offset:%d sc1" % (S(SWS), KVF))
        stamp(26)
    def sched(k):
        for a in opt.sched.split("/")[k].split():
            if a == "f": kvflag()
            elif a == "h": hop_run(1)
            else: (wd_issue if a[0] == "i" else wd_pull)(int(a[1]))
    def prefetch(part, va=2, vd=39):
        if opt.pf == 0 or part > 2: return
        A("v_lshlrev_b32 v%d, 7, v0" % va)
        if opt.pf == 3:
            if part == 0:
                A("s_lshl2_add_u32 s52, s2, s22")
                A("s_mul_i32 s53, s52, %d" % (14 * 128))
                A("v_min_u32 v%d, %d, v%d" % (va, 13 * 128, va))
                A.vmem("buffer_load_dword v%d, v%d, %s, s53 offen %s" % (vd, va, S(SWD), opt.pfpol), "pf")
            elif part == 2:
                A("s_lshl2_add_u32 s52, s2, s22")
                A("s_lshl_b32 s53, s52, 9")
                A("v_and_b32 v%d, 0x180, v%d" % (va, va))
                A.vmem("buffer_load_dword v%d, v%d, %s, s53 offen %s" % (vd, va, S(SWO), opt.pfpol), "pf")
            return
        A("s_lshr_b32 s52, s2, 3")
        A("s_lshl2_add_u32 s52, s52, s22")
        if part == 0:
            A("s_mul_i32 s53, s52, %d" % (112 * 128))
            A.vmem("buffer_load_dword v%d, v%d, %s, s53 offen %s" % (vd, va, S(SWD), opt.pfpol), "pf")
        elif part == 1:
            A("s_mul_i32 s53, s52, %d" % (112 * 128))
            A("s_add_u32 s53, s53, %d" % (64 * 128))
            A("v_min_u32 v%d, %d, v%d" % (va, 47 * 128, va))
            A.vmem("buffer_load_dword v%d, v%d, %s, s53 offen %s" % (vd, va, S(SWD), opt.pfpol), "pf")
        elif part == 2:
            A("v_and_b32 v%d, 0xf80, v%d" % (va, va))
            A("s_lshl_b32 s53, s52, 12")
            A.vmem("buffer_load_dword v%d, v%d, %s, s53 offen %s" % (vd, va, S(SWO), opt.pfpol), "pf")
    PFS = [int(x) for x in opt.pfs.split(",")]

    T = HR
    for s in range(8):
        A.wait(vm={("st", s)})
        stamp(17 + s)
        A("s_barrier")
        for f in pend: f()
        pend = []
        if s + 2 <= 7:
            pend = stage_ops(s + 2)
            for f in pend[:CUTS[s + 1]]: f()
            pend = pend[CUTS[s + 1]:]
        for part in range(3):
            if PFS[part] == s: prefetch(part)
        if s == opt.hops: hop_run(1)
        if s == 5:
            p2_setup()
            hflag_addr()
            A.vmem("buffer_load_dword v190, v3, %s, 0 offen sc0 sc1" % S(SDBG), "dflag")
        if s == 6:
            sched(0)
            A("s_lshl_b32 s52, s22, 8")
            A("s_add_u32 s52, s52, 0x%x" % PB)
            A("v_lshlrev_b32 v%d, 2, v0" % (T + 1))
            A("v_add_u32 v4, s52, v%d" % (T + 1))
            A("s_lshl_b32 s69, s22, 9")
            A("s_add_u32 s69, s69, s70")
            A("s_mul_i32 s52, s77, %d" % (2 * 114688))
            A("s_mul_i32 s53, s22, 28672")
            A("s_add_u32 s52, s52, s53")
            A("v_add_u32 v1, s52, v14")
            A("v_add_u32 v2, 114688, v1")
            A("s_mul_i32 s52, s22, 7")
            A("s_lshl_b32 s60, 0x7f, s52")
            A("s_and_b32 s53, s77, 3")
            A("s_lshl3_add_u32 s53, s53, s23")
            A("s_lshl_b32 s53, 1, s53")
            A("s_or_b32 s60, s60, s53")
            A("s_lshl2_add_u32 s71, s20, s22")
            A("s_lshl2_add_u32 s71, s71, s70")
            A("v_mov_b32 v5, 1")
        if s == 7:
            A.wait(vm={"dflag"})
            A("s_movk_i32 s57, 0x%x" % SPIN)
            A.label("L_DPOLL")
            A("v_cmp_ne_u32 vcc, 0, v190")
            A("s_cmp_eq_u32 vcc_lo, -1")
            A("s_cbranch_scc1 L_DPOLL_OK")
            A("s_sleep 1")
            A("buffer_load_dword v190, v3, %s, 0 offen sc0 sc1" % S(SDBG))
            A("s_waitcnt vmcnt(0)")
            A("s_sub_u32 s57, s57, 1")
            A("s_cmp_lg_u32 s57, 0")
            A("s_cbranch_scc1 L_DPOLL")
            A.label("L_DPOLL_OK")
            sched(1)
    stamp(30)
    A("s_barrier")
    for w in range(4):
        A("ds_read_b32 v%d, v4 offset:%d" % (T + 2 + w, w * 2048))
    for w in range(4):
        A("ds_read_b32 v%d, v4 offset:%d" % (T + 6 + w, w * 2048 + 1024))
    A("s_waitcnt lgkmcnt(0)")
    A("s_barrier")
    A("v_add_f32 v%d, v%d, v%d" % (T + 2, T + 2, T + 3)); A("v_add_f32 v%d, v%d, v%d" % (T + 4, T + 4, T + 5))
    A("v_add_f32 v%d, v%d, v%d" % (T + 6, T + 6, T + 7)); A("v_add_f32 v%d, v%d, v%d" % (T + 8, T + 8, T + 9))
    A("v_add_f32 v%d, v%d, v%d" % (T + 2, T + 2, T + 4))
    A.vmem("buffer_atomic_add_f32 v%d, v%d, %s, s69 offen" % (T + 2, T + 1, S(SWS)), "atom")
    A("v_add_f32 v%d, v%d, v%d" % (T + 6, T + 6, T + 8))
    A("s_mov_b64 exec, 15")
    A.vmem("buffer_atomic_add_f32 v%d, v%d, %s, s69 offen offset:256" % (T + 6, T + 1, S(SWS)), "atom")
    A("s_mov_b64 exec, -1")
    stamp(25)
    sched(2)
    stamp(31)
    sched(3)
    mark("hop %d 2" % opt.hgf)
    poll_h("L_FPOLL", 60)
    stamp(27)
    def h_loads(i):
        A.vmem("buffer_load_dwordx4 %s, v1, %s, s80 offen sc1" % (vr(hreg(i, 0), 4), S(SWS)), ("h", i))
        A.vmem("buffer_load_dwordx4 %s, v2, %s, s80 offen sc1" % (vr(hreg(i, 1), 4), S(SWS)), ("h", i))
        A("s_addk_i32 s80, 1024")
        A("s_cmp_eq_u32 s80, s59")
        A("s_cselect_b32 s80, 0, s80")
    for i in range(NH): h_loads(i)
    g_load(10)
    NI = 28
    assert len(gslot) == 7
    resid = [i for i in range(NI) if i not in wreg]
    mark("al 2")
    while resid and freeregs:
        i = resid.pop(0); wreg[i] = freeregs.pop(0); tr_reads(wslot(i), wreg[i], ("wd", i))
    for i in range(NI):
        A.wait(vm={("h", i)})
        for t in range(2):
            for mt in range(2):
                A.wait(lg={("wd", i, t)})
                d = vr(acc2(t, mt), 16)
                A("v_mfma_f32_32x32x16_bf16 %s, %s, %s, %s" % (d, vr(wreg[i] + 4 * t, 4), vr(hreg(i, mt), 4), "0" if i == 0 else d))
        if i + NH < NI: h_loads(i + NH)
        if resid:
            k = resid.pop(0); assert k > i + 1
            wreg[k] = wreg[i]; tr_reads(wslot(k), wreg[k], ("wd", k))
    mark("al 1")
    stamp(28)
    for s_ in write_partial(66, 24): A.lds(s_)

    A.label("L_RED")
    A.vm = []
    A("v_lshrrev_b32 v16, 3, v0")
    A("v_and_b32 v17, 7, v0")
    A("v_lshlrev_b32 v18, 1, v17")
    A("v_xor_b32 v18, v18, v16")
    A("s_lshl_b32 s52, s23, 3")
    A("v_add_u32 v16, s52, v16")
    A("v_lshlrev_b32 v18, 4, v18")
    A("v_lshl_add_u32 v1, v16, 8, v18")
    A("v_xor_b32 v2, 16, v1")
    A("v_add_u32 v3, 73728, v1")
    A("v_add_u32 v4, 73728, v2")
    A("v_add_u32 v5, 147456, v1")
    A("v_add_u32 v6, 147456, v2")
    A("v_lshlrev_b32 v17, 4, v17")
    A("v_lshl_add_u32 v0, v16, 10, v17")
    A("s_lshl_b32 s66, s77, 16")
    A("s_lshl_b32 s52, s78, 7")
    A("s_add_u32 s66, s66, s52")
    A("s_waitcnt vmcnt(0) lgkmcnt(0)")
    A.lg = []
    A("s_barrier")
    stamp(29)
    R0 = 64
    plist = [(1, 0), (1, 24576), (1, 49152), (3, 0), (3, 24576), (3, 40960), (3, 57344), (5, 0)]
    for p, (areg, off) in enumerate(plist):
        for c in range(2):
            A.lds("ds_read_b128 %s, v%d offset:%d" % (vr(R0 + p * 8 + c * 4, 4), areg + c, off), ("r", p))
    for p in (1, 2, 3, 5, 6, 7):
        A.wait(lg={("r", p)})
        b = R0 + (p // 4) * 32
        for j in range(4):
            A("v_pk_add_f32 %s, %s, %s" % (vr(b + 2 * j, 2), vr(b + 2 * j, 2), vr(R0 + p * 8 + 2 * j, 2)))
        if p == 3:
            for j in range(8):
                A("v_mul_f32 v%d, v%d, v11" % (R0 + j, R0 + j))
    for j in range(8):
        A("v_fmac_f32 v%d, v%d, v10" % (R0 + j, R0 + 32 + j))
    for j in range(4):
        A("v_cvt_pk_bf16_f32 v%d, v%d, v%d" % (R0 + 8 + j, R0 + 2 * j, R0 + 2 * j + 1))
    A.vmem("buffer_store_dwordx4 %s, v0, %s, s66 offen %s" % (vr(R0 + 8, 4), S(SOUT), opt.opol))
    mark("hop -")
    mark("al 0")
    if opt.stamps:
        A.wait(vm='all')
        stamp(9)
        A("v_mbcnt_lo_u32_b32 v1, -1, 0")
        A("v_mbcnt_hi_u32_b32 v1, -1, v1")
        A("v_lshlrev_b32 v1, 2, v1")
        A("s_lshl3_add_u32 s3, s2, s23")
        A("s_lshl_b32 s3, s3, 8")
        A("s_add_u32 s3, s3, 0x%x" % ST_OFF)
        A("buffer_store_dword v15, v1, %s, s3 offen" % S(SWS))
        if opt.enc >= 0:
            A("s_cmp_lg_u32 s2, %d" % opt.encwg)
            A("s_cbranch_scc1 L_END")
            A("s_cmp_lg_u32 s23, %d" % (4 if opt.enc >= 16 else 0))
            A("s_cbranch_scc1 L_END")
            A("v_readlane_b32 s52, v15, %d" % opt.enc)
            A("v_readlane_b32 s53, v15, 0")
            A("s_nop 1")
            A("s_sub_u32 s52, s52, s53")
            A("s_min_u32 s52, s52, 5000")
            A("s_mul_i32 s52, s52, 20")
            A("s_mov_b32 s53, s100")
            A("s_mov_b32 s57, 0x40000")
            A.label("L_ENC")
            A("s_sleep 2")
            A("s_memrealtime s[100:101]")
            A("s_waitcnt lgkmcnt(0)")
            A("s_sub_u32 s54, s100, s53")
            A("s_sub_u32 s57, s57, 1")
            A("s_cmp_eq_u32 s57, 0")
            A("s_cbranch_scc1 L_END")
            A("s_cmp_lt_u32 s54, s52")
            A("s_cbranch_scc1 L_ENC")
    A.label("L_END")
    A("s_endpgm")

    mark("p2 64")
    A.label("L_COMPUTE")
    A.vm = []; A.lg = []
    A("v_and_b32 v8, 31, v0")
    A("v_lshrrev_b32 v9, 5, v0")
    A("v_bfe_u32 v10, v0, 1, 3")
    A("v_xor_b32 v10, v10, v9")
    A("v_lshlrev_b32 v10, 4, v10")
    A("v_lshl_add_u32 v10, v8, 7, v10")
    A("s_mul_i32 s52, s22, 24576")
    A("v_add_u32 v1, s52, v10")
    A("v_xor_b32 v2, 32, v1")
    A("v_xor_b32 v3, 64, v1")
    A("v_xor_b32 v4, 96, v1")
    A("v_bfe_u32 v10, v0, 2, 2")
    A("v_and_b32 v11, 3, v0")
    A("v_bfe_u32 v12, v0, 4, 1")
    A("v_lshrrev_b32 v13, 1, v11")
    A("v_lshl_add_u32 v13, v12, 1, v13")
    A("v_bfe_u32 v14, v0, 3, 1")
    A("v_lshlrev_b32 v14, 2, v14")
    A("v_xor_b32 v13, v13, v14")
    A("v_lshlrev_b32 v13, 4, v13")
    A("v_and_b32 v14, 1, v11")
    A("v_lshl_add_u32 v13, v14, 3, v13")
    A("v_lshl_add_u32 v13, v10, 7, v13")
    A("v_lshl_add_u32 v13, v9, 10, v13")
    A("v_add_u32 v5, 0x%x, v13" % WB)
    A("v_xor_b32 v6, 64, v5")
    A("v_lshlrev_b32 v13, 3, v11")
    A("v_lshl_add_u32 v13, v12, 5, v13")
    A("v_lshl_add_u32 v13, v10, 6, v13")
    A("v_lshl_add_u32 v13, v9, 9, v13")
    A("v_add_u32 v7, 0x%x, v13" % (WB + 16384))
    A("v_lshlrev_b32 v8, 4, v0")
    for v in list(range(VX, VKV + 1)) + [145]: A("v_mov_b32 v%d, 0" % v)
    A("s_waitcnt lgkmcnt(0)")
    srds_first()
    srds_rest()
    if opt.stamps and not opt.st0: stamp(0)
    A("s_or_b32 s75, s20, s22")
    A("s_cmp_lg_u32 s75, 0")
    A("s_cbranch_scc1 L_NOZERO")
    for i in range(4): A("v_mov_b32 v%d, 0" % (16 + i))
    A("s_lshl_b32 s53, s21, 11")
    A("s_add_u32 s53, s53, 0x%x" % KVT_OFF)
    A("buffer_store_dwordx4 v[16:19], v8, %s, s53 offen sc0 sc1" % S(SWS))
    A("buffer_store_dwordx4 v[16:19], v8, %s, s53 offen offset:1024 sc0 sc1" % S(SWS))
    A.label("L_NOZERO")
    gate_loads()
    for part in range(3):
        if PFS[part] == -2: prefetch(part, 56 + part, 88)
    hop_run(0)
    stamp(13)
    A("s_lshl_b32 s54, s20, 3")
    A("s_lshl_b32 s55, s22, 1")
    A("s_add_u32 s54, s54, s55")
    A("s_mul_i32 s60, s54, 114688")
    A("s_lshl_b32 s56, s21, 12")
    A("s_add_u32 s60, s60, s56")
    A("s_add_u32 s61, s60, 114688")
    A("s_lshl_b32 s62, s54, 15")
    A("s_sub_u32 s56, s21, 28")
    A("s_lshl_b32 s56, s56, 13")
    A("s_add_u32 s62, s62, s56")
    A("s_add_u32 s62, s62, 0x%x" % Q_OFF)
    A("s_add_u32 s63, s62, 4096")
    A("s_add_u32 s64, s62, 32768")
    A("s_add_u32 s65, s64, 4096")
    A("s_lshl2_add_u32 s66, s20, s22")
    A("s_lshl_b32 s66, s66, 11")
    A("s_lshl2_add_u32 s66, s21, s66")
    A("s_add_u32 s66, s66, 0x%x" % (KVT_OFF + HF))
    A("s_lshl_b32 s54, s22, 11")
    A("s_add_u32 s54, s54, 0x%x" % PB)
    A("v_add_u32 v9, s54, v8")
    for i in range(4): A("v_mov_b32 v%d, 0x3f803f80" % (ONES + i))
    A("v_mov_b32 v11, 1")
    A("s_mov_b32 s67, 0x%x" % LOG2E)
    A("s_mov_b32 s68, 0x358637bd")
    A("s_mov_b32 s69, 0xffff0000")
    A("s_movk_i32 s70, 8192"); A("s_movk_i32 s71, -16384"); A("s_movk_i32 s72, 20480"); A("s_mov_b32 s73, -40960")
    A("s_mov_b32 s59, 0"); A("s_mov_b32 s74, 7")
    A("s_and_b32 s53, s77, 3")
    A("s_lshl1_add_u32 s56, s53, s78")
    for h in range(8):
        A("s_add_u32 s57, s56, %d" % h)
        A("s_and_b32 s57, s57, 7")
        A("s_lshl_b32 s%d, s57, 10" % (8 + h))

    ACC = 96
    def acc(mt, t): return ACC + (mt * 5 + t) * 16
    FR = [16, 44]
    def xf(st, mt): return FR[st] + mt * 4
    def wf(st, t): return FR[st] + 8 + t * 4
    def xread(ks, mt, dst): return "ds_read_b128 %s, v%d offset:%d" % (vr(dst, 4), 1 + ks, mt * 4096)
    def wread(ks, t, rd, dst):
        if t < 4: off = ks * 2048 + rd * 512 + (8192 if t >= 2 else 0); a = 5 + (t & 1)
        else: off = ks * 1024 + rd * 256; a = 7
        return "ds_read_b64_tr_b16 %s, v%d offset:%d" % (vr(dst + 2 * rd, 2), a, off)
    def reads_for(ks):
        st = ks % 2
        out = []
        def xr(mt): out.append((xread(ks, mt, xf(st, mt)), ("x", ks, mt)))
        def wr(t):
            for rd in range(2): out.append((wread(ks, t, rd, wf(st, t)), ("w", ks, t)))
        xr(0); wr(0); xr(1); wr(1); wr(2); wr(3); wr(4)
        return out
    def mfma(mt, t, xreg, wreg_, zero=False):
        c = "0" if zero else vr(acc(mt, t), 16)
        if t < 4: return "v_mfma_f32_32x32x16_bf16 %s, %s, %s, %s" % (vr(acc(mt, t), 16), vr(wreg_, 4), vr(xreg, 4), c)
        return "v_mfma_f32_32x32x16_bf16 %s, %s, %s, %s" % (vr(acc(mt, t), 16), vr(xreg, 4), vr(wreg_, 4), c)
    def kstep(ks, zero=False):
        st = ks % 2
        nxt = reads_for((ks + 1) % 4)
        order = [(mt, t) for t in range(5) for mt in range(2)]
        extra = []
        if ks == 2:
            extra = ["v_add_u32 v%d, s56, v%d" % (v, v) for v in (1, 2, 3, 4)] + ["v_add_u32 v%d, s57, v%d" % (v, v) for v in (5, 6, 7)] + ["s_sub_u32 s74, s74, 1"]
        if ks == 1:
            extra = ["s_add_u32 s59, s59, 1", "s_cmp_eq_u32 s59, 3", "s_cselect_b32 s59, 0, s59", "s_cselect_b32 s56, s71, s70", "s_cselect_b32 s57, s73, s72", "s_nop 0"]
        for i, (mt, t) in enumerate(order):
            if ks == 3 and i == 0: A.wait(lg='all')
            elif opt.wpol == 0: A.wait(lg={("x", ks, mt), ("w", ks, t)})
            elif opt.wpol == 1:
                if i == 0: A.wait(lg='all')
            else:
                if i == 0: A.wait(lg={("w", ks, 1)})
                if i == 4: A.wait(lg={("w", ks, 4)})
            A(mfma(mt, t, xf(st, mt), wf(st, t), zero))
            if ks == 3 and i == 0: A("s_barrier")
            k = 0
            while nxt and k < 2:
                s_, tg = nxt.pop(0); A.lds(s_, tg); k += 1
            if not k:
                for _ in range(2):
                    if extra: A(extra.pop(0))
        assert not extra
    A.wait(vm={"g"})
    A("s_cmp_lg_u32 s75, 0")
    A("s_cbranch_scc1 L_NOFLAG")
    A("s_lshl_b32 s52, s21, 2")
    A("buffer_store_dword v11, off, %s, s52 sc0 sc1" % S(SDBG))
    A.label("L_NOFLAG")
    gate_compute()
    for part in range(3):
        if PFS[part] == -1: prefetch(part, 56 + part, 88)
    stamp(11)
    A("s_barrier")
    stamp(1)
    mark("al 2")
    mark("hop 0 -1")
    for (s_, tg) in reads_for(0): A.lds(s_, tg)
    kstep(0, True)
    st_ks1 = list(A.lg)
    A("s_branch L_KS1")
    mark("p2 %d" % opt.loopal)
    A.label("L_LOOP")
    A.lg = [tg for (_, tg) in reads_for(0)]
    kstep(0)
    assert A.lg == st_ks1, (A.lg, st_ks1)
    mark("p2 8")
    A.label("L_KS1")
    kstep(1); kstep(2); kstep(3)
    assert A.lg == [tg for (_, tg) in reads_for(0)], A.lg
    A("s_cmp_lg_u32 s74, 0")
    A("s_cbranch_scc1 L_LOOP")
    mark("hop 0 1")
    stamp(14)
    if opt.stamps: pass
    XR = {0: 16, 1: 44, 2: 52, 3: 60}
    WR = {(0, t): 24 + 4 * t for t in range(5)}
    M = []
    M += [(0, 0, 4), (0, 1, 4), (0, 0, 0), (0, 1, 0)]
    for ks in (1, 2, 3): M += [(ks, 0, 4), (ks, 1, 4)]
    KVDONE = len(M) - 1
    M += [(0, 0, 2), (0, 1, 2)]
    for ks in (1, 2, 3): M += [(ks, 0, 0), (ks, 1, 0), (ks, 0, 2), (ks, 1, 2)]
    PB_END = len(M) - 1
    for ks in (0, 1, 2, 3): M += [(ks, 0, 1), (ks, 1, 1), (ks, 0, 3), (ks, 1, 3)]
    last_use = {}
    for k, (ks, mt, t) in enumerate(M): last_use[(ks, t)] = k
    R = []
    ring = [(92, -1), (68, -1)]
    seen = set()
    for k, (ks, mt, t) in enumerate(M):
        if ks and ("x", ks) not in seen:
            seen.add(("x", ks))
            for m2 in range(2): R.append((xread(ks, m2, XR[ks] + 4 * m2), ("x", ks, m2), -1))
        if (ks, t) not in WR:
            ring.sort(key=lambda x: x[1])
            reg, fr = ring.pop(0)
            assert fr < k
            WR[(ks, t)] = reg
            for rd in range(2): R.append((wread(ks, t, rd, reg), ("w", ks, t), fr))
        if last_use[(ks, t)] == k: ring.append((WR[(ks, t)], k))
    a0, a1 = acc(0, 4), acc(1, 4)
    def kv_fill():
        F = []
        for r in range(0, 16, 2):
            t0, t1 = TT + (r % 4), TT + 1 + (r % 4)
            F += [("v_permlane16_swap_b32 v%d, v%d" % (a0 + r, a1 + r), 4), ("v_permlane16_swap_b32 v%d, v%d" % (a0 + r + 1, a1 + r + 1), 4)]
            F += [("v_mul_f32 v%d, s67, v%d" % (t0, a0 + r), 4), ("v_mul_f32 v%d, s67, v%d" % (t1, a0 + r + 1), 4)]
            F += [("v_exp_f32_e64 v%d, v%d clamp" % (t0, t0), 8), ("v_exp_f32_e64 v%d, v%d clamp" % (t1, t1), 8)]
            F += [("v_max_f32 v%d, s68, v%d" % (a0 + r, a0 + r), 4), ("v_max_f32 v%d, s68, v%d" % (a0 + r + 1, a0 + r + 1), 4)]
            F += [("v_cvt_pk_bf16_f32 v%d, v%d, v%d" % (a1 + r // 2, a1 + r, a1 + r + 1), 4)]
            F += [("v_add_f32 v%d, v%d, v%d" % (t0, t0, a0 + r), 4), ("v_add_f32 v%d, v%d, v%d" % (t1, t1, a0 + r + 1), 4)]
            F += [("v_cvt_pk_bf16_f32 v%d, v%d, v%d" % (a0 + r // 2, t0, t1), 4)]
            if r in (8, 14):
                i = 0 if r == 8 else 1
                if r == 14: F += [("s_nop 1", 8)]
                F += [("v_mfma_f32_16x16x32_bf16 %s, %s, %s, %s" % (vr(DKV, 4), vr(a0 + 4 * i, 4), vr(a1 + 4 * i, 4), vr(DKV, 4) if i else "0"), 16)]
                F += [("v_mfma_f32_16x16x32_bf16 %s, %s, %s, %s" % (vr(DZ, 4), vr(a0 + 4 * i, 4), vr(ONES, 4), vr(DZ, 4) if i else "0"), 16)]
        return F
    def kv_out():
        A.lds("ds_write_b128 v9, %s" % vr(DKV, 4), "kvp")
        A.lds("ds_write_b128 v9, %s offset:1024" % vr(DZ, 4), "kvp")
    def h_epi(tp, packed):
        F = []
        for mt in range(2):
            g, u = acc(mt, tp), acc(mt, 2 + tp)
            for half in range(2):
                for i in range(4 * half, 4 * half + 4):
                    if packed: F.append(("v_pk_mul_f32 %s, %s, %s" % (vr(g + 2 * i, 2), vr(g + 2 * i, 2), vr(u + 2 * i, 2)), 8))
                    else:
                        F += [("v_mul_f32 v%d, v%d, v%d" % (g + 2 * i + x, g + 2 * i + x, u + 2 * i + x), 4) for x in range(2)]
                for i in range(4 * half, 4 * half + 4):
                    F.append(("v_cvt_pk_bf16_f32 v%d, v%d, v%d" % (g + i, g + 2 * i, g + 2 * i + 1), 4))
                F.append(("buffer_store_dwordx4 %s, v8, %s, s%d offen offset:%d sc1" % (vr(g + 4 * half, 4), S(SWS), 60 + mt, (2 * tp + half) * 1024), 8))
        return F
    def q_epi(tp, packed):
        F = []
        for t in (tp, tp + 2):
            for mt in range(2):
                g = acc(mt, t)
                for half in range(2):
                    for i in range(4 * half, 4 * half + 4):
                        F.append(("v_cvt_pk_bf16_f32 v%d, v%d, v%d" % (g + i, g + 2 * i, g + 2 * i + 1), 4))
                    F.append(("buffer_store_dwordx4 %s, v8, %s, s%d offen offset:%d sc1" % (vr(g + 4 * half, 4), S(SWS), 62 + mt * 2 + (t >> 1), ((2 * t + half) % 4) * 1024), 8))
        return F
    def run(k0, k1, F, fstart, R, budget, hooks={}):
        for k in range(k0, k1):
            ks, mt, t = M[k]
            A.wait(lg={("x", ks, mt), ("w", ks, t)})
            A(mfma(mt, t, XR[ks] + 4 * mt, WR[(ks, t)]))
            if k in hooks: hooks[k]()
            b = budget; n = 0
            while R and R[0][2] <= k and n < 3:
                s_, tg, _ = R.pop(0); A.lds(s_, tg); n += 1; b -= 4
            if k >= fstart:
                while F and b > 0:
                    s_, c = F.pop(0); A(s_); b -= c
    F = kv_fill()
    nF = sum(c for _, c in F)
    run(0, PB_END + 1, F, KVDONE + 1, R, opt.kvb)
    for s_, c in F: A(s_)
    stamp(12)
    lg_save = list(A.lg); R_save = list(R)
    def tail(epi, lbl):
        A.lg = list(lg_save); R2 = list(R_save)
        def b8():
            kv_out()
        def b8b():
            A.wait(lg={"kvp"})
            A("s_waitcnt vmcnt(0)")
            A("s_barrier")
        lastw = PB_END + opt.b9
        def b9():
            assert not R2
            A.wait(lg='all')
            A("s_barrier")
        F2 = epi(0, False)
        run(PB_END + 1, len(M), F2, PB_END + 3, R2, opt.hb, {PB_END + 1: b8, PB_END + 3: b8b, lastw: b9})
        for s_, c in F2: A(s_)
        stamp(2)
        for s_, c in epi(1, True): A(s_)
    A("s_cmp_ge_u32 s21, 28")
    A("s_cbranch_scc1 L_QEPI")
    tail(h_epi, "h")
    A("s_branch L_ATT")
    mark("p2 8")
    A.label("L_QEPI")
    A("s_nop 7")
    A("s_nop 0")
    tail(q_epi, "q")
    A.label("L_ATT")
    mark("al 1")
    stamp(3)
    if opt.aprio: A("s_setprio %d" % opt.aprio)
    w2_voffs()
    A("s_lshl_b32 s62, s22, 14")
    A("s_add_u32 s62, s62, 0x%x" % WB)
    A("s_lshl_b32 s64, s22, 17")
    A.vm = []
    def wo_loads(h):
        A("s_add_u32 m0, s62, %d" % (h * 2048))
        A("s_lshl4_add_u32 s52, s%d, s64" % (8 + h))
        A.vmem("buffer_load_dwordx4 v6, %s, s52 offen lds" % S(SWO), ("w", h))
        A.vmem("buffer_load_dwordx4 v7, %s, s52 offen offset:1024 lds" % S(SWO), ("w", h))
    for h in range(opt.wopre): wo_loads(h)
    A("s_lshl_b32 s52, s77, 16")
    A("s_lshl_b32 s53, s22, 13")
    A("s_add_u32 s52, s52, s53")
    A("s_add_u32 s52, s52, 0x%x" % Q_OFF)
    A("v_add_u32 v1, s52, v8")
    A("v_add_u32 v2, 0x8000, v1")
    A("s_waitcnt vmcnt(%d)" % (2 * opt.wopre))
    A.vmem("buffer_store_dword v11, off, %s, s66 sc1" % S(SWS))
    stamp(5)
    mark("hop %d 3" % opt.hga)
    for h in range(opt.wopre, 8): wo_loads(h)
    tr_addrs(62)
    hflag_addr()
    A("v_and_b32 v14, 31, v0")
    A("v_lshrrev_b32 v13, 5, v0")
    A("v_min_u32 v5, 16, v14")
    A("v_lshlrev_b32 v5, 4, v5")
    A("v_lshl_add_u32 v5, v13, 9, v5")
    A("s_lshl_b32 s52, s22, 14")
    A("s_add_u32 s52, s52, 0x%x" % KVT_OFF)
    A("v_add_u32 v5, s52, v5")
    A("v_lshrrev_b32 v12, 3, v0")
    A("v_and_b32 v13, 7, v0")
    A("v_lshlrev_b32 v13, 4, v13")
    A("v_lshl_add_u32 v12, v12, 11, v13")
    A("s_add_u32 s63, s52, %d" % KVF)
    A("s_add_u32 s52, s22, 28")
    A("s_lshl_b32 s60, 1, s52")
    A("s_and_b32 s53, s77, 3")
    A("s_lshl3_add_u32 s53, s53, s23")
    A("s_lshl_b32 s53, 1, s53")
    A("s_or_b32 s60, s60, s53")
    poll_h("L_APOLL", 60)
    stamp(6)
    QR = 64; KVR = 128; OD = 32
    def qr(h, mt): return QR + 8 * h + 4 * mt
    for h in range(8):
        A.vmem("buffer_load_dwordx4 %s, v1, %s, s%d offen sc1" % (vr(qr(h, 0), 4), S(SWS), 8 + h), ("q", h, 0))
        A.vmem("buffer_load_dwordx4 %s, v2, %s, s%d offen sc1" % (vr(qr(h, 1), 4), S(SWS), 8 + h), ("q", h, 1))
    g_load(10)
    V = A
    def P(h):
        for mt in range(2):
            A.wait(vm={("q", h, mt)})
            q = qr(h, mt)
            for j in range(0, 4, 2):
                for jj in range(2):
                    t = 24 + 2 * jj
                    V("v_lshlrev_b32 v%d, 16, v%d" % (t, q + j + jj))
                    V("v_and_b32 v%d, s69, v%d" % (t + 1, q + j + jj))
                for x in range(4):
                    V("v_mul_f32 v%d, s67, v%d" % (32 + x, 24 + x))
                for x in range(4):
                    V("v_exp_f32_e64 v%d, v%d clamp" % (32 + x, 32 + x))
                for x in range(4):
                    V("v_max_f32 v%d, s68, v%d" % (24 + x, 24 + x))
                for x in range(4):
                    V("v_add_f32 v%d, v%d, v%d" % (24 + x, 24 + x, 32 + x))
                for jj in range(2):
                    t = 24 + 2 * jj
                    V("v_cvt_pk_bf16_f32 v%d, v%d, v%d" % (q + j + jj, t, t + 1))
    def C(h):
        A.wait(vm={("kv", h)})
        for j in range(4):
            V("v_cvt_pk_bf16_f32 v%d, v%d, v%d" % (KVR + 8 * h + j, KVR + 8 * h + 2 * j, KVR + 8 * h + 2 * j + 1))
    def Mm(h):
        for mt in range(2):
            A("v_mfma_f32_32x32x16_bf16 %s, %s, %s, 0" % (vr(OD + 16 * mt, 16), vr(KVR + 8 * h, 4), vr(qr(h, mt), 4)))
    def N(h):
        V("v_add_f32 v24, s68, v%d" % (OD + 8))
        V("v_add_f32 v25, s68, v%d" % (OD + 24))
        V("v_rcp_f32 v24, v24")
        V("v_rcp_f32 v25, v25")
        for mt in range(2):
            d = OD + 16 * mt
            for j in range(8):
                V("v_mul_f32 v%d, v%d, v%d" % (d + j, d + j, 24 + mt))
            for j in range(4):
                V("v_cvt_pk_bf16_f32 v%d, v%d, v%d" % (qr(h, mt) + j, d + 2 * j, d + 2 * j + 1))
    def Rr(h):
        A.wait(vm={("w", h)})
        tr_reads(h * 2048, 16, ("w", h))
    def W(h):
        for t in range(2):
            for mt in range(2):
                A.wait(lg={("w", h, t)})
                d = vr(acc2(t, mt), 16)
                A("v_mfma_f32_32x32x16_bf16 %s, %s, %s, %s" % (d, vr(16 + 4 * t, 4), vr(qr(h, mt), 4), "0" if h == 0 else d))
    NP = opt.npre
    for h in range(NP): P(h)
    A("s_movk_i32 s57, 0x%x" % SPIN)
    A.label("L_KPOLL")
    A("buffer_load_dwordx4 v[36:39], v12, %s, s63 offen sc1" % S(SWS))
    A("s_waitcnt vmcnt(0)")
    A("v_and_b32 v36, v36, v37")
    A("v_and_b32 v38, v38, v39")
    A("v_and_b32 v36, v36, v38")
    A("v_cmp_ne_u32 vcc, 0, v36")
    A("s_cmp_eq_u64 vcc, -1")
    A("s_cbranch_scc1 L_KPOLL_OK")
    if opt.psleep: A("s_sleep %d" % opt.psleep)
    A("s_sub_u32 s57, s57, 1")
    A("s_cmp_lg_u32 s57, 0")
    A("s_cbranch_scc1 L_KPOLL")
    A.label("L_KPOLL_OK")
    A.vm = []
    stamp(7)
    for h in range(8):
        A("s_lshl_b32 s52, s%d, 1" % (8 + h))
        A.vmem("buffer_load_dwordx4 %s, v5, %s, s52 offen sc1" % (vr(KVR + 8 * h, 4), S(SWS)), ("kv", h))
        A.vmem("buffer_load_dwordx4 %s, v5, %s, s52 offen offset:1024 sc1" % (vr(KVR + 8 * h + 4, 4), S(SWS)), ("kv", h))
    for h in range(NP, 8): P(h)
    C(0); Mm(0)
    for h in range(1, 8):
        C(h); Rr(h - 1); N(h - 1); Mm(h); W(h - 1)
    Rr(7); N(7); W(7)
    stamp(8)
    for s_ in write_partial(62, 24): A.lds(s_)
    A("s_branch L_RED")
    mark("hop -")
    lines = hz.fix(A.lines, True)
    lines, hops, size = post.process(lines, opt.hop, opt.align)
    print("code bytes", size, "hops", hops)
    return "\n".join(lines) + "\n"

def main():
    ap = argparse.ArgumentParser()
    ap.add_argument("-o", default="out.s")
    ap.add_argument("--stamps", action="store_true")
    ap.add_argument("--st0", type=int, default=1)
    ap.add_argument("--enc", type=int, default=-1)
    ap.add_argument("--encwg", type=int, default=17)
    ap.add_argument("--k1win", type=int, default=4)
    ap.add_argument("--cuts", type=str, default="9,13,13,13,13,13,13")
    ap.add_argument("--gst", type=int, default=3)
    ap.add_argument("--pf", type=int, default=0)
    ap.add_argument("--pfs", type=str, default="3,4,5")
    ap.add_argument("--sched", type=str, default="i2/i0 p0 i2/i1/f p1 i0 p2 i2 p3 i1")
    ap.add_argument("--pfpol", type=str, default="")
    ap.add_argument("--opol", type=str, default="")
    ap.add_argument("--psleep", type=int, default=1)
    ap.add_argument("--aprio", type=int, default=0)
    ap.add_argument("--npre", type=int, default=4)
    ap.add_argument("--wopre", type=int, default=0)
    ap.add_argument("--wpol", type=int, default=2)
    ap.add_argument("--kvb", type=int, default=32)
    ap.add_argument("--hb", type=int, default=24)
    ap.add_argument("--hop", type=int, default=0)
    ap.add_argument("--b9", type=int, default=7)
    ap.add_argument("--hops", type=int, default=-1)
    ap.add_argument("--hgf", type=int, default=0)
    ap.add_argument("--hga", type=int, default=0)
    ap.add_argument("--align", type=int, default=1)
    ap.add_argument("--loopal", type=int, default=64)
    opt = ap.parse_args()
    out = HEADER
    out += "; @launch grid=(256,1,1) block=(512,1,1) lds=%d\n" % LDS
    out += '.amdgcn_target "amdgcn-amd-amdhsa--gfx950"\n.text\n'
    out += fused(opt)
    out += '.section .rodata,"a"\n'
    out += kd(NAME + "_kernel", 256, 102, 256)
    open(opt.o, "w").write(out)

if __name__ == "__main__":
    main()
```
